```python
import torch

def _softmax(x, axis=-1):
    return torch.softmax(x, dim=axis)
def _gelu(x):
    return torch.nn.functional.gelu(x, approximate="tanh")
def _silu(x):
    return torch.nn.functional.silu(x)
def _sigmoid(x):
    return torch.sigmoid(x)
def _layernorm(x, axis=-1, eps=1e-5):
    m = x.mean(dim=axis, keepdim=True)
    v = x.var(dim=axis, keepdim=True, unbiased=False)
    return (x - m) / torch.sqrt(v + eps)
def _scatter_add(tgt, idx, src, axis=0):
    return tgt.clone().index_add_(axis, idx, src)
def _segment_sum(src, seg, n):
    out = torch.zeros((n,) + src.shape[1:], dtype=src.dtype)
    return out.index_add_(0, seg, src)
def _pad(x, pw):
    flat = tuple(v for pair in reversed(pw) for v in pair)
    return torch.nn.functional.pad(x, flat)

kernel_name = 'standalone__gqa_block_cached__near_ridge'

def setup_inputs():

    _w = (lambda a: (lambda t: t.to(torch.bfloat16) if t.is_floating_point() else t)(torch.as_tensor(a)))
    B, Sq, D = 8, 144, 512
    Hq, Hkv, Sk, Dh = 32, 32, 1024, 128
    assert Hq % Hkv == 0, (Hq, Hkv)
    return {
        "x": _w((lambda *s: torch.randn(*s, dtype=torch.bfloat16) * 0.8)(B, Sq, D)),
        "k_cache": _w((lambda *s: torch.randn(*s, dtype=torch.bfloat16) * 0.8)(B, Hkv, Sk, Dh)),
        "v_cache": _w((lambda *s: torch.randn(*s, dtype=torch.bfloat16) * 0.05)(B, Hkv, Sk, Dh)),
        "wq": _w((lambda *s: torch.randn(*s, dtype=torch.bfloat16) * 0.8)(D, Hq * Dh) * (D ** -0.5)),
        "wo": _w((lambda *s: torch.randn(*s, dtype=torch.bfloat16) * 0.05)(Hq * Dh, D) * ((Hq * Dh) ** -0.5)),
    }

def reference(x, k_cache, v_cache, wq, wo):
    B, Sq, D = x.shape
    Hq, Dh = 32, 128
    Hkv = k_cache.shape[1]
    rep = Hq // Hkv
    q = (lambda x, *d: x.permute(*d))((x @ wq).reshape(B, Sq, Hq, Dh), 0, 2, 1, 3)
    k = (lambda x, n, axis: torch.repeat_interleave(x, n, dim=axis))(k_cache, rep, axis=1)
    v = (lambda x, n, axis: torch.repeat_interleave(x, n, dim=axis))(v_cache, rep, axis=1)
    scores = torch.einsum("bhqd,bhkd->bhqk", q, k) * (Dh ** -0.5)
    p = _softmax(scores, axis=-1)
    o = torch.einsum("bhqk,bhkd->bhqd", p, v)
    return (lambda x, *d: x.permute(*d))(o, 0, 2, 1, 3).reshape(B, Sq, Hq * Dh) @ wo
```

```python
import math, sys

out = []
def e(s=""):
    out.append(s)

HEADER = """; Kernarg layout for this problem (64 bytes, ptrs only, base s[0:1]):
; @launch kernel=attn_kernel grid=(256,1,1) block=(576,1,1) lds=163840
; @launch kernel=oproj_kernel grid=(256,1,1) block=(512,1,1) lds=81920
.amdgcn_target "amdgcn-amd-amdhsa--gfx950"
.text
"""

import struct
def f2u(f):
    return struct.unpack("<I", struct.pack("<f", f))[0]

CSCALE = (128 ** -0.5) * math.log2(math.e)

def gen_attn():
    e(".globl attn_kernel")
    e(".p2align 8")
    e(".type attn_kernel,@function")
    e("attn_kernel:")
    e("  s_cmp_ge_u32 s2, 256")
    e("  s_cbranch_scc1 L_attn_done")
    e("  s_load_dwordx8 s[4:11], s[0:1], 0")
    e("  s_load_dwordx2 s[12:13], s[0:1], 56")
    e("  v_lshrrev_b32 v1, 6, v0")
    e("  v_and_b32 v0, 63, v0")
    e("  s_nop 0")
    e("  v_readfirstlane_b32 s36, v1")
    e("  s_and_b32 s3, s2, 7")
    e("  s_lshr_b32 s37, s2, 3")
    e("  s_and_b32 s38, s37, 3")
    e("  s_lshl_b32 s3, s3, 2")
    e("  s_add_u32 s38, s38, s3")
    e("  s_lshr_b32 s37, s37, 2")
    e("  v_and_b32 v1, 15, v0")
    e("  v_lshrrev_b32 v2, 4, v0")
    e("  s_lshl_b32 s3, s36, 3")
    e("  v_add_u32 v3, s3, v2")
    e("  v_add_u32 v24, 4, v3")
    for n, vr in ((0, "v3"), (1, "v24")):
        e(f"  v_and_b32 v25, 15, {vr}")
        e(f"  v_xor_b32 v25, v25, v1")
        e(f"  v_lshlrev_b32 v25, 4, v25")
        e(f"  v_lshl_add_u32 v{4+n}, {vr}, 8, v25")
        e(f"  v_and_b32 v25, 7, {vr}")
        e(f"  v_lshlrev_b32 v25, 1, v25")
        e(f"  v_xor_b32 v25, v25, v1")
        e(f"  v_lshlrev_b32 v25, 4, v25")
        e(f"  v_lshl_add_u32 v{6+n}, {vr}, 8, v25")
        e(f"  v_and_b32 v25, 3, {vr}")
        e(f"  v_lshlrev_b32 v25, 2, v25")
        e(f"  v_xor_b32 v25, v25, v1")
        e(f"  v_lshlrev_b32 v25, 4, v25")
        e(f"  v_lshl_add_u32 v{8+n}, {vr}, 13, v25")
    e("  s_lshl_b32 s3, s36, 4")
    e("  v_add_u32 v25, s3, v1")
    e("  v_lshlrev_b32 v25, 10, v25")
    e("  v_lshl_add_u32 v26, v2, 4, v25")
    e("  s_waitcnt lgkmcnt(0)")
    e("  s_lshl_b32 s3, s37, 5")
    e("  s_add_u32 s3, s3, s38")
    e("  s_lshl_b32 s39, s3, 18")
    e("  s_lshr_b32 s40, s3, 14")
    e("  s_add_u32 s16, s6, s39")
    e("  s_addc_u32 s17, s7, s40")
    e("  s_mov_b32 s18, 262144")
    e("  s_mov_b32 s19, 0x00020000")
    e("  s_add_u32 s20, s8, s39")
    e("  s_addc_u32 s21, s9, s40")
    e("  s_mov_b32 s22, 262144")
    e("  s_mov_b32 s23, 0x00020000")
    e("  s_lshl_b32 s39, s38, 8")
    e("  s_add_u32 s24, s10, s39")
    e("  s_addc_u32 s25, s11, 0")
    e("  s_sub_u32 s26, 4194304, s39")
    e("  s_mov_b32 s27, 0x00020000")
    e("  s_mul_i32 s40, s37, 147456")
    e("  s_add_u32 s28, s4, s40")
    e("  s_addc_u32 s29, s5, 0")
    e("  s_mov_b32 s30, 147456")
    e("  s_mov_b32 s31, 0x00020000")
    e("  s_mul_i32 s40, s37, 1179648")
    e("  s_add_u32 s40, s40, s39")
    e("  s_add_u32 s32, s12, s40")
    e("  s_addc_u32 s33, s13, 0")
    e("  s_mov_b32 s34, 1179648")
    e("  s_mov_b32 s35, 0x00020000")
    e(f"  s_mov_b32 s44, 0x{f2u(CSCALE):08x}")
    def xreg(ks):
        if ks < 4: return 28 + 4 * ks
        if ks < 10: return 76 + 4 * (ks - 4)
        return 140 + 4 * (ks - 10)
    for ks in range(16):
        r = xreg(ks)
        e(f"  buffer_load_dwordx4 v[{r}:{r+3}], v26, s[28:31], 0 offen offset:{64*ks}")
    e("  s_lshl_b32 s45, s36, 11")
    def dma_pair(slot_expr_sreg, srdA, soffA, vA, srdB, soffB, vB):
        e(f"  s_mov_b32 m0, {slot_expr_sreg}")
        e(f"  s_add_u32 s46, {slot_expr_sreg}, 1024")
        e(f"  buffer_load_dwordx4 v{vA}, {srdA}, {soffA} offen lds")
        e(f"  s_mov_b32 m0, s46")
        e(f"  s_add_u32 s46, {slot_expr_sreg}, 16384")
        e(f"  buffer_load_dwordx4 v{vA+1}, {srdA}, {soffA} offen lds")
        e(f"  s_mov_b32 m0, s46")
        e(f"  s_add_u32 s46, {slot_expr_sreg}, 17408")
        e(f"  buffer_load_dwordx4 v{vB}, {srdB}, {soffB} offen lds")
        e(f"  s_mov_b32 m0, s46")
        e(f"  s_nop 0")
        e(f"  buffer_load_dwordx4 v{vB+1}, {srdB}, {soffB} offen lds")
    uid = [0]
    def issue_W(p, phys):
        uid[0] += 1
        e("  s_cmp_ge_u32 s36, 8")
        e(f"  s_cbranch_scc1 L_skip{uid[0]}")
        e(f"  s_add_u32 s47, s45, {phys*32768}")
        e(f"  s_mov_b32 s48, {(2*p)*524288}")
        e(f"  s_mov_b32 s49, {(2*p+1)*524288}")
        dma_pair("s47", "s[24:27]", "s48", 8, "s[24:27]", "s49", 8)
        e(f"L_skip{uid[0]}:")
    def issue_KV_imm(j, phys):
        uid[0] += 1
        e("  s_cmp_ge_u32 s36, 8")
        e(f"  s_cbranch_scc1 L_skip{uid[0]}")
        e(f"  s_add_u32 s47, s45, {phys*32768}")
        e(f"  s_mov_b32 s48, {j*16384}")
        dma_pair("s47", "s[16:19]", "s48", 4, "s[20:23]", "s48", 6)
        e(f"L_skip{uid[0]}:")
    issue_W(0, 4)
    issue_W(1, 2)
    issue_W(2, 3)
    issue_KV_imm(0, 0)
    issue_KV_imm(1, 1)
    e("  s_cmp_lt_u32 s36, 8")
    e("  s_cbranch_scc1 L_nw8")
    e("  s_waitcnt vmcnt(0)")
    e("L_nw8:")
    e("  v_bfe_u32 v24, v0, 2, 2")
    e("  v_and_b32 v25, 3, v0")
    e("  v_lshl_add_u32 v27, v2, 3, v24")
    e("  v_lshlrev_b32 v27, 8, v27")
    e("  v_lshl_add_u32 v27, v25, 4, v27")
    for s in range(4):
        e(f"  v_xor_b32 v3, {s}, v24")
        e(f"  v_lshl_add_u32 v{10+s}, v3, 6, v27")
    for r in range(44, 76):
        e(f"  v_mov_b32 v{r}, 0")
    wphys = [4, 2, 3, 4]
    wwait = [16, 12, 12, 4]
    prev = 0
    for p in range(4):
        e(f"  s_waitcnt vmcnt({wwait[p]})")
        e("  s_barrier")
        if p == 1: issue_W(3, 4)
        if p == 2: issue_KV_imm(2, 2)
        if p == 3: issue_KV_imm(3, 3)
        delta = wphys[p] * 32768 - prev
        prev = wphys[p] * 32768
        e(f"  s_mov_b32 s3, {delta & 0xffffffff}")
        for s in range(4):
            e(f"  v_add_u32 v{10+s}, s3, v{10+s}")
        for tile in range(2):
            for kk in range(2):
                ks = 4 * p + 2 * tile + kk
                for j in range(8):
                    s, t = j >> 1, j & 1
                    for hh in range(2):
                        off = tile * 16384 + kk * 8192 + hh * 1024 + 8 * t
                        r = 100 + 4 * j + 2 * hh
                        e(f"  ds_read_b64_tr_b16 v[{r}:{r+1}], v{10+s} offset:{off}")
                xr = xreg(ks)
                for j in range(8):
                    e(f"  s_waitcnt lgkmcnt({14-2*j})")
                    a = 100 + 4 * j
                    d = 44 + 4 * j
                    e(f"  v_mfma_f32_16x16x32_bf16 v[{d}:{d+3}], v[{a}:{a+3}], v[{xr}:{xr+3}], v[{d}:{d+3}]")
    for s in range(4):
        e(f"  v_add_u32 v3, {4*s}, v2")
        e(f"  v_xor_b32 v3, v3, v1")
        e(f"  v_lshlrev_b32 v3, 4, v3")
        e(f"  v_lshl_add_u32 v{10+s}, v1, 8, v3")
    e("  v_lshl_add_u32 v27, v2, 2, v24")
    e("  v_and_b32 v26, 7, v27")
    e("  v_lshlrev_b32 v27, 8, v27")
    e("  v_lshrrev_b32 v3, 1, v25")
    e("  v_lshl_add_u32 v27, v3, 4, v27")
    e("  v_and_b32 v3, 1, v25")
    e("  v_lshl_add_u32 v27, v3, 3, v27")
    for j in range(8):
        e(f"  v_xor_b32 v3, {j}, v26")
        e(f"  v_lshl_add_u32 v{14+j}, v3, 5, v27")
    e("  s_nop 7")
    for s in range(4):
        for t in range(2):
            a = 44 + 4 * (2 * s + t)
            q = 28 + 4 * s + 2 * t
            e(f"  v_cvt_pk_bf16_f32 v{q}, v{a}, v{a+1}")
            e(f"  v_cvt_pk_bf16_f32 v{q+1}, v{a+2}, v{a+3}")
    for r in range(44, 76):
        e(f"  v_mov_b32 v{r}, 0")
    e("  v_mov_b32 v22, 0xff800000")
    e("  v_mov_b32 v23, 0")
    e("  s_mov_b32 s40, 0")
    e("  s_mov_b32 s41, 0")
    e("  s_mov_b32 s42, 131072")
    e("  s_mov_b32 s43, 65536")
    e("L_loop:")
    e("  s_waitcnt vmcnt(12)")
    e("  s_barrier")
    e("  s_cmp_ge_u32 s36, 8")
    e("  s_cbranch_scc1 L_skipL")
    e("  s_add_u32 s47, s45, s42")
    dma_pair("s47", "s[16:19]", "s43", 4, "s[20:23]", "s43", 6)
    e("L_skipL:")
    for t in range(4):
        for s in range(4):
            r = 100 + 4 * (4 * t + s)
            e(f"  ds_read_b128 v[{r}:{r+3}], v{10+s} offset:{t*4096}")
    for t in range(4):
        for s in range(4):
            idx = 4 * t + s
            r = 100 + 4 * idx
            d = 76 + 4 * t
            q = 28 + 4 * s
            e(f"  s_waitcnt lgkmcnt({15-idx})")
            c = "0" if s == 0 else f"v[{d}:{d+3}]"
            e(f"  v_mfma_f32_16x16x32_bf16 v[{d}:{d+3}], v[{r}:{r+3}], v[{q}:{q+3}], {c}")
    for u in range(2):
        for j in range(8):
            for hh in range(2):
                r = 100 + 4 * (8 * u + j) + 2 * hh
                e(f"  ds_read_b64_tr_b16 v[{r}:{r+1}], v{14+j} offset:{16384 + u*8192 + hh*4096}")
    S = [76 + i for i in range(16)]
    e(f"  v_max3_f32 v24, v{S[0]}, v{S[1]}, v{S[2]}")
    e(f"  v_max3_f32 v25, v{S[3]}, v{S[4]}, v{S[5]}")
    e(f"  v_max3_f32 v24, v24, v{S[6]}, v{S[7]}")
    e(f"  v_max3_f32 v25, v25, v{S[8]}, v{S[9]}")
    e(f"  v_max3_f32 v24, v24, v{S[10]}, v{S[11]}")
    e(f"  v_max3_f32 v25, v25, v{S[12]}, v{S[13]}")
    e(f"  v_max3_f32 v24, v24, v{S[14]}, v{S[15]}")
    e(f"  v_max_f32 v24, v24, v25")
    e(f"  v_mov_b32 v25, v24")
    e(f"  s_nop 1")
    e(f"  v_permlane32_swap_b32 v24, v25")
    e(f"  v_max_f32 v24, v24, v25")
    e(f"  v_mov_b32 v25, v24")
    e(f"  s_nop 1")
    e(f"  v_permlane16_swap_b32 v24, v25")
    e(f"  v_max_f32 v24, v24, v25")
    e(f"  v_mul_f32 v24, s44, v24")
    e(f"  v_max_f32 v24, v24, v22")
    e(f"  v_sub_f32 v25, v22, v24")
    e(f"  v_exp_f32 v25, v25")
    e(f"  v_mov_b32 v22, v24")
    for i in range(16):
        e(f"  v_fma_f32 v{S[i]}, v{S[i]}, s44, -v24")
    for i in range(16):
        e(f"  v_exp_f32 v{S[i]}, v{S[i]}")
    e(f"  v_mul_f32 v23, v23, v25")
    for r in range(44, 76):
        e(f"  v_mul_f32 v{r}, v{r}, v25")
    e(f"  v_add_f32 v26, v{S[0]}, v{S[1]}")
    e(f"  v_add_f32 v27, v{S[2]}, v{S[3]}")
    for i in range(4, 16, 2):
        e(f"  v_add_f32 v26, v26, v{S[i]}")
        e(f"  v_add_f32 v27, v27, v{S[i+1]}")
    e(f"  v_add_f32 v23, v23, v26")
    e(f"  v_add_f32 v23, v23, v27")
    for i in range(8):
        e(f"  v_cvt_pk_bf16_f32 v{92+i}, v{S[2*i]}, v{S[2*i+1]}")
    e("  s_nop 1")
    for u in range(2):
        for j in range(8):
            idx = 8 * u + j
            need = 2 * idx + 1
            w = min(15, 31 - need)
            e(f"  s_waitcnt lgkmcnt({w})")
            a = 100 + 4 * idx
            d = 44 + 4 * j
            p = 92 + 4 * u
            e(f"  v_mfma_f32_16x16x32_bf16 v[{d}:{d+3}], v[{a}:{a+3}], v[{p}:{p+3}], v[{d}:{d+3}]")
    e("  s_mov_b32 s42, s41")
    e("  s_add_u32 s41, s41, 32768")
    e("  s_cmp_ge_u32 s41, 163840")
    e("  s_cselect_b32 s41, 0, s41")
    e("  s_sub_u32 s3, s41, s42")
    for r in range(10, 22):
        e(f"  v_add_u32 v{r}, s3, v{r}")
    e("  s_add_u32 s43, s43, 16384")
    e("  s_add_u32 s40, s40, 1")
    e("  s_cmp_lt_u32 s40, 16")
    e("  s_cbranch_scc1 L_loop")
    e("  v_mov_b32 v25, v23")
    e("  s_nop 1")
    e("  v_permlane32_swap_b32 v23, v25")
    e("  v_add_f32 v23, v23, v25")
    e("  v_mov_b32 v25, v23")
    e("  s_nop 1")
    e("  v_permlane16_swap_b32 v23, v25")
    e("  v_add_f32 v23, v23, v25")
    e("  v_rcp_f32 v23, v23")
    e("  s_lshl_b32 s3, s36, 4")
    e("  v_add_u32 v24, s3, v1")
    e("  v_lshlrev_b32 v24, 13, v24")
    e("  v_lshl_add_u32 v24, v2, 3, v24")
    e("  s_nop 4")
    for r in range(44, 76):
        e(f"  v_mul_f32 v{r}, v{r}, v23")
    for j in range(8):
        a = 44 + 4 * j
        e(f"  v_cvt_pk_bf16_f32 v{100+2*j}, v{a}, v{a+1}")
        e(f"  v_cvt_pk_bf16_f32 v{101+2*j}, v{a+2}, v{a+3}")
    for j in range(8):
        e(f"  buffer_store_dwordx2 v[{100+2*j}:{101+2*j}], v24, s[32:35], 0 offen offset:{32*j}")
    e("L_attn_done:")
    e("  s_endpgm")

def gen_oproj():
    e(".globl oproj_kernel")
    e(".p2align 8")
    e(".type oproj_kernel,@function")
    e("oproj_kernel:")
    e("  s_cmp_ge_u32 s2, 256")
    e("  s_cbranch_scc1 L_op_done")
    e("  s_load_dwordx4 s[4:7], s[0:1], 32")
    e("  s_load_dwordx2 s[8:9], s[0:1], 56")
    e("  v_lshrrev_b32 v1, 6, v0")
    e("  v_and_b32 v0, 63, v0")
    e("  s_nop 0")
    e("  v_readfirstlane_b32 s36, v1")
    e("  s_and_b32 s37, s2, 7")
    e("  s_lshr_b32 s3, s2, 3")
    e("  s_and_b32 s38, s3, 1")
    e("  s_lshr_b32 s39, s3, 1")
    e("  s_mul_i32 s40, s37, 144")
    e("  s_mul_i32 s3, s38, 72")
    e("  s_add_u32 s40, s40, s3")
    e("  v_and_b32 v1, 15, v0")
    e("  v_lshrrev_b32 v2, 4, v0")
    e("  v_lshlrev_b32 v3, 4, v2")
    for rt in range(4):
        e(f"  v_add_u32 v9, {16*rt}, v1")
        e(f"  v_lshl_add_u32 v{4+rt}, v9, 13, v3")
    e("  v_and_b32 v9, 7, v1")
    e("  v_add_u32 v9, 64, v9")
    e("  v_lshl_add_u32 v8, v9, 13, v3")
    e("  v_lshlrev_b32 v10, 13, v2")
    e("  v_lshl_add_u32 v10, v1, 2, v10")
    e("  v_add_u32 v11, 4096, v10")
    e("  s_waitcnt lgkmcnt(0)")
    e("  s_lshl_b32 s3, s40, 13")
    e("  s_lshl_b32 s41, s36, 10")
    e("  s_add_u32 s3, s3, s41")
    e("  s_add_u32 s12, s8, s3")
    e("  s_addc_u32 s13, s9, 0")
    e("  s_sub_u32 s14, 9437184, s3")
    e("  s_mov_b32 s15, 0x00020000")
    e("  s_lshl_b32 s3, s36, 19")
    e("  s_lshl_b32 s41, s39, 6")
    e("  s_add_u32 s3, s3, s41")
    e("  s_add_u32 s16, s4, s3")
    e("  s_addc_u32 s17, s5, 0")
    e("  s_sub_u32 s18, 4194304, s3")
    e("  s_mov_b32 s19, 0x00020000")
    e("  s_lshl_b32 s3, s40, 10")
    e("  s_add_u32 s3, s3, s41")
    e("  s_add_u32 s20, s6, s3")
    e("  s_addc_u32 s21, s7, 0")
    e("  s_sub_u32 s22, 1179648, s3")
    e("  s_mov_b32 s23, 0x00020000")
    e("  s_mov_b32 s24, 0x05040100")
    e("  s_mov_b32 s25, 0x07060302")
    ACC = 16
    AP = 56
    BUF = 64
    NST = 4
    for r in range(ACC, ACC + 40):
        e(f"  v_mov_b32 v{r}, 0")
    def issue(ks):
        st = BUF + 28 * (ks % NST)
        e(f"  s_mov_b32 s26, {ks*32768}")
        for rt in range(5):
            e(f"  buffer_load_dwordx4 v[{st+4*rt}:{st+4*rt+3}], v{4+rt}, s[12:15], 0 offen offset:{64*ks}")
        for ee in range(8):
            e(f"  buffer_load_dword v{st+20+ee}, v{10 + (ee>>2)}, s[16:19], s26 offen offset:{(ee&3)*1024}")
    for ks in range(NST - 1):
        issue(ks)
    for ks in range(16):
        if ks + NST - 1 < 16:
            issue(ks + NST - 1)
        rem = min(15 - ks, NST - 1)
        e(f"  s_waitcnt vmcnt({13*rem})")
        st = BUF + 28 * (ks % NST)
        for p in range(4):
            e(f"  v_perm_b32 v{AP+p}, v{st+20+2*p+1}, v{st+20+2*p}, s24")
            e(f"  v_perm_b32 v{AP+4+p}, v{st+20+2*p+1}, v{st+20+2*p}, s25")
        e("  s_nop 1")
        for rt in range(5):
            for ct in range(2):
                d = ACC + 4 * (2 * rt + ct)
                e(f"  v_mfma_f32_16x16x32_bf16 v[{d}:{d+3}], v[{AP+4*ct}:{AP+4*ct+3}], v[{st+4*rt}:{st+4*rt+3}], v[{d}:{d+3}]")
    e("  s_mul_i32 s3, s36, 10240")
    e("  v_lshlrev_b32 v12, 4, v0")
    e("  v_add_u32 v13, s3, v12")
    e("  s_nop 7")
    for tl in range(10):
        d = ACC + 4 * tl
        e(f"  ds_write_b128 v13, v[{d}:{d+3}] offset:{tl*1024}")
    e("  s_waitcnt lgkmcnt(0)")
    e("  s_barrier")
    e("  s_cmp_ge_u32 s36, 5")
    e("  s_cbranch_scc1 L_op_done")
    e("  s_lshl_b32 s3, s36, 11")
    e("  v_add_u32 v13, s3, v12")
    e("  v_add_u32 v15, 40960, v13")
    for ww in range(8):
        for ct in range(2):
            r = BUF + 8 * ww + 4 * ct
            e(f"  ds_read_b128 v[{r}:{r+3}], v{13 if ww < 4 else 15} offset:{(ww&3)*10240 + ct*1024}")
    e("  s_waitcnt lgkmcnt(0)")
    for ww in range(1, 8):
        for k in range(8):
            e(f"  v_add_f32 v{BUF+k}, v{BUF+k}, v{BUF+8*ww+k}")
    for r in range(4):
        e(f"  v_cvt_pk_bf16_f32 v{AP+r}, v{BUF+r}, v{BUF+4+r}")
    e("  s_lshl_b32 s3, s36, 4")
    e("  v_add_u32 v14, s3, v1")
    e("  v_cmp_gt_u32 vcc, 72, v14")
    e("  v_lshlrev_b32 v14, 10, v14")
    e("  v_lshl_add_u32 v14, v2, 4, v14")
    e("  s_and_saveexec_b64 s[28:29], vcc")
    e(f"  buffer_store_dwordx4 v[{AP}:{AP+3}], v14, s[20:23], 0 offen")
    e("L_op_done:")
    e("  s_endpgm")

def desc(name, vgpr, sgpr=64):
    e(f".amdhsa_kernel {name}")
    e(f"  .amdhsa_next_free_vgpr {vgpr}")
    e(f"  .amdhsa_next_free_sgpr {sgpr}")
    e(f"  .amdhsa_accum_offset {(vgpr+3)//4*4}")
    e("  .amdhsa_group_segment_fixed_size 0")
    e("  .amdhsa_kernarg_size 64")
    e("  .amdhsa_user_sgpr_count 2")
    e("  .amdhsa_user_sgpr_kernarg_segment_ptr 1")
    e("  .amdhsa_system_sgpr_workgroup_id_x 1")
    e(".end_amdhsa_kernel")

out.append(HEADER)
gen_attn()
gen_oproj()
e('.section .rodata,"a"')
e(".p2align 6")
desc("attn_kernel", 164)
e(".p2align 6")
desc("oproj_kernel", 176)
open(sys.argv[1], "w").write("\n".join(out) + "\n")
```

```python
import math, sys, struct

out = []
def e(s=""):
    out.append(s)

ARGS = sys.argv[2:]
STAMP = "stamp" in ARGS
NOCOMP = "nocomp" in ARGS
NT = "" if "nont" in ARGS else " nt"

HEADER = """; Kernarg layout for this problem (64 bytes, ptrs only, base s[0:1]):
; @launch kernel=attn_kernel grid=(256,1,1) block=(576,1,1) lds=163840
; @launch kernel=oproj_kernel grid=(256,1,1) block=(576,1,1) lds=131072
; @launch kernel=reduce_kernel grid=(256,1,1) block=(576,1,1) lds=0
.amdgcn_target "amdgcn-amd-amdhsa--gfx950"
.text
"""

def f2u(f):
    return struct.unpack("<I", struct.pack("<f", f))[0]

CSCALE = (128 ** -0.5) * math.log2(math.e)
PART_OFF = 16777216
STAMP_OFF = 67108864

def stamp():
    if not STAMP: return
    e("  s_memtime s[52:53]")
    e("  s_waitcnt lgkmcnt(0)")
    e("  v_mov_b32 v165, s52")
    e("  v_cmp_eq_u32 vcc, s50, v166")
    e("  s_nop 1")
    e("  v_cndmask_b32 v164, v164, v165, vcc")
    e("  s_add_u32 s50, s50, 1")

def xreg(ks):
    if ks < 4: return 28 + 4 * ks
    if ks < 10: return 76 + 4 * (ks - 4)
    return 140 + 4 * (ks - 10)

uid = [0]
def dma_pair(slot, srdA, soffA, vA, srdB, soffB, vB, nt=""):
    e(f"  s_mov_b32 m0, {slot}")
    e(f"  s_add_u32 s46, {slot}, 1024")
    e(f"  buffer_load_dwordx4 v{vA}, {srdA}, {soffA} offen{nt} lds")
    e(f"  s_mov_b32 m0, s46")
    e(f"  s_add_u32 s46, {slot}, 16384")
    e(f"  buffer_load_dwordx4 v{vA+1}, {srdA}, {soffA} offen{nt} lds")
    e(f"  s_mov_b32 m0, s46")
    e(f"  s_add_u32 s46, {slot}, 17408")
    e(f"  buffer_load_dwordx4 v{vB}, {srdB}, {soffB} offen{nt} lds")
    e(f"  s_mov_b32 m0, s46")
    e(f"  s_nop 0")
    e(f"  buffer_load_dwordx4 v{vB+1}, {srdB}, {soffB} offen{nt} lds")

def lane_setup():
    e("  v_lshrrev_b32 v1, 6, v0")
    e("  v_and_b32 v0, 63, v0")
    e("  s_nop 0")
    e("  v_readfirstlane_b32 s36, v1")
    e("  v_and_b32 v1, 15, v0")
    e("  v_lshrrev_b32 v2, 4, v0")

def w_dma_voffs(rowshift, vdst):
    for n, vr in ((0, "v3"), (1, "v24")):
        e(f"  v_and_b32 v25, 3, {vr}")
        e(f"  v_bfe_u32 v27, {vr}, 4, 1")
        e(f"  v_lshl_add_u32 v25, v27, 2, v25")
        e(f"  v_lshlrev_b32 v25, 1, v25")
        e(f"  v_xor_b32 v25, v25, v1")
        e(f"  v_lshlrev_b32 v25, 4, v25")
        e(f"  v_lshl_add_u32 v{vdst+n}, {vr}, {rowshift}, v25")

def tr_addr_setup():
    e("  v_bfe_u32 v24, v0, 2, 2")
    e("  v_and_b32 v25, 3, v0")
    e("  v_and_b32 v26, 1, v2")
    e("  v_lshl_add_u32 v26, v26, 2, v24")
    e("  v_lshl_add_u32 v27, v2, 4, v24")
    e("  v_lshlrev_b32 v27, 8, v27")
    e("  v_lshrrev_b32 v3, 1, v25")
    e("  v_lshl_add_u32 v27, v3, 4, v27")
    e("  v_and_b32 v3, 1, v25")
    e("  v_lshl_add_u32 v27, v3, 3, v27")
    for j in range(8):
        e(f"  v_xor_b32 v3, {j}, v26")
        e(f"  v_lshl_add_u32 v{14+j}, v3, 5, v27")

def gemm_pair(p, acc0):
    def reads(kidx, j):
        tile, hb = kidx >> 1, kidx & 1
        for hh in range(2):
            off = tile * 16384 + (8 * hb + 4 * hh) * 256
            r = 100 + 4 * j + 2 * hh
            e(f"  ds_read_b64_tr_b16 v[{r}:{r+1}], v{14+j} offset:{off}")
    for j in range(8):
        reads(0, j)
    for kidx in range(4):
        xr = xreg(4 * p + kidx)
        for j in range(8):
            e(f"  s_waitcnt lgkmcnt({14 if kidx < 3 else 14-2*j})")
            a = 100 + 4 * j
            d = acc0 + 4 * j
            e(f"  v_mfma_f32_16x16x32_bf16 v[{d}:{d+3}], v[{a}:{a+3}], v[{xr}:{xr+3}], v[{d}:{d+3}]")
            if kidx < 3:
                reads(kidx + 1, j)

def gen_attn():
    e(".globl attn_kernel")
    e(".p2align 8")
    e(".type attn_kernel,@function")
    e("attn_kernel:")
    e("  s_cmp_ge_u32 s2, 256")
    e("  s_cbranch_scc1 L_attn_done")
    e("  s_load_dwordx8 s[4:11], s[0:1], 0")
    e("  s_load_dwordx2 s[12:13], s[0:1], 56")
    if STAMP:
        e("  s_mov_b32 s50, 0")
        e("  v_mov_b32 v164, 0")
        e("  v_and_b32 v166, 63, v0")
        stamp()
    lane_setup()
    e("  s_and_b32 s3, s2, 7")
    e("  s_lshr_b32 s37, s2, 3")
    e("  s_and_b32 s38, s37, 3")
    e("  s_lshl_b32 s3, s3, 2")
    e("  s_add_u32 s38, s38, s3")
    e("  s_lshr_b32 s37, s37, 2")
    e("  s_lshl_b32 s3, s36, 3")
    e("  v_add_u32 v3, s3, v2")
    e("  v_add_u32 v24, 4, v3")
    for n, vr in ((0, "v3"), (1, "v24")):
        e(f"  v_and_b32 v25, 15, {vr}")
        e(f"  v_xor_b32 v25, v25, v1")
        e(f"  v_lshlrev_b32 v25, 4, v25")
        e(f"  v_lshl_add_u32 v{4+n}, {vr}, 8, v25")
        e(f"  v_and_b32 v25, 7, {vr}")
        e(f"  v_lshlrev_b32 v25, 1, v25")
        e(f"  v_xor_b32 v25, v25, v1")
        e(f"  v_lshlrev_b32 v25, 4, v25")
        e(f"  v_lshl_add_u32 v{6+n}, {vr}, 8, v25")
    w_dma_voffs(13, 8)
    e("  s_lshl_b32 s3, s36, 4")
    e("  v_add_u32 v25, s3, v1")
    e("  v_lshlrev_b32 v25, 10, v25")
    e("  v_lshl_add_u32 v23, v2, 5, v25")
    e("  s_waitcnt lgkmcnt(0)")
    e("  s_lshl_b32 s3, s37, 5")
    e("  s_add_u32 s3, s3, s38")
    e("  s_lshl_b32 s39, s3, 18")
    e("  s_lshr_b32 s40, s3, 14")
    e("  s_add_u32 s16, s6, s39")
    e("  s_addc_u32 s17, s7, s40")
    e("  s_mov_b32 s18, 262144")
    e("  s_mov_b32 s19, 0x00020000")
    e("  s_add_u32 s20, s8, s39")
    e("  s_addc_u32 s21, s9, s40")
    e("  s_mov_b32 s22, 262144")
    e("  s_mov_b32 s23, 0x00020000")
    e("  s_lshl_b32 s39, s38, 8")
    e("  s_add_u32 s24, s10, s39")
    e("  s_addc_u32 s25, s11, 0")
    e("  s_sub_u32 s26, 4194304, s39")
    e("  s_mov_b32 s27, 0x00020000")
    e("  s_mul_i32 s40, s37, 147456")
    e("  s_add_u32 s28, s4, s40")
    e("  s_addc_u32 s29, s5, 0")
    e("  s_mov_b32 s30, 147456")
    e("  s_mov_b32 s31, 0x00020000")
    e("  s_mul_i32 s40, s37, 1179648")
    e("  s_add_u32 s40, s40, s39")
    e("  s_add_u32 s32, s12, s40")
    e("  s_addc_u32 s33, s13, 0")
    e("  s_mov_b32 s34, 1179648")
    e("  s_mov_b32 s35, 0x00020000")
    e(f"  s_mov_b32 s44, 0x{f2u(CSCALE):08x}")
    e("  s_lshl_b32 s45, s36, 11")
    def issue_W(p, phys):
        uid[0] += 1
        e("  s_cmp_ge_u32 s36, 8")
        e(f"  s_cbranch_scc1 L_skip{uid[0]}")
        e(f"  s_add_u32 s47, s45, {phys*32768}")
        e(f"  s_mov_b32 s48, {(2*p)*524288}")
        e(f"  s_mov_b32 s49, {(2*p+1)*524288}")
        dma_pair("s47", "s[24:27]", "s48", 8, "s[24:27]", "s49", 8)
        e(f"L_skip{uid[0]}:")
    def issue_KV_imm(j, phys):
        uid[0] += 1
        e("  s_cmp_ge_u32 s36, 8")
        e(f"  s_cbranch_scc1 L_skip{uid[0]}")
        e(f"  s_add_u32 s47, s45, {phys*32768}")
        e(f"  s_mov_b32 s48, {j*16384}")
        dma_pair("s47", "s[16:19]", "s48", 4, "s[20:23]", "s48", 6, NT)
        e(f"L_skip{uid[0]}:")
    def xloads(lo, hi):
        for ks in range(lo, hi):
            r = xreg(ks)
            e(f"  buffer_load_dwordx4 v[{r}:{r+3}], v23, s[28:31], 0 offen offset:{128*(ks>>1) + 16*(ks&1)}")
    xloads(0, 16)
    issue_W(0, 4)
    issue_W(1, 2)
    issue_W(2, 3)
    issue_KV_imm(0, 0)
    issue_KV_imm(1, 1)
    e("  s_cmp_lt_u32 s36, 8")
    e("  s_cbranch_scc1 L_nw8")
    e("  s_waitcnt vmcnt(0)")
    e("L_nw8:")
    tr_addr_setup()
    for r in range(44, 76):
        e(f"  v_mov_b32 v{r}, 0")
    wphys = [4, 2, 3, 4]
    wwait = [16, 12, 12, 4]
    prev = 0
    for p in range(4):
        stamp()
        e(f"  s_waitcnt vmcnt({wwait[p]})")
        e("  s_barrier")
        stamp()
        if p == 1: issue_W(3, 4)
        if p == 2: issue_KV_imm(2, 2)
        if p == 3: issue_KV_imm(3, 3)
        delta = wphys[p] * 32768 - prev
        prev = wphys[p] * 32768
        e(f"  s_mov_b32 s3, {delta & 0xffffffff}")
        for j in range(8):
            e(f"  v_add_u32 v{14+j}, s3, v{14+j}")
        gemm_pair(p, 44)
    e(f"  v_mul_u32_u24 v3, {12*256}, v2")
    e(f"  v_add_u32 v3, {prev}, v3")
    for j in range(8):
        e(f"  v_sub_u32 v{14+j}, v{14+j}, v3")
    for s in range(4):
        e(f"  v_add_u32 v3, {4*s}, v2")
        e(f"  v_xor_b32 v3, v3, v1")
        e(f"  v_lshlrev_b32 v3, 4, v3")
        e(f"  v_lshl_add_u32 v{10+s}, v1, 8, v3")
    e("  v_and_b32 v3, 1, v2")
    e("  v_lshlrev_b32 v3, 5, v3")
    e("  v_add_u32 v3, v3, v1")
    e("  v_lshlrev_b32 v26, 2, v3")
    e("  v_add_u32 v27, 64, v26")
    e("  v_cmp_lt_u32 vcc, 1, v2")
    for j in range(8):
        a = 44 + 4 * j
        e(f"  v_cvt_pk_bf16_f32 v{100+2*j}, v{a}, v{a+1}")
        e(f"  v_cvt_pk_bf16_f32 v{101+2*j}, v{a+2}, v{a+3}")
    for s in range(4):
        for e2 in range(4):
            ad = 26 + (e2 >> 1)
            h = e2 & 1
            e(f"  ds_bpermute_b32 v{116+8*s+2*e2}, v{ad}, v{100+2*(2*s)+h}")
            e(f"  ds_bpermute_b32 v{117+8*s+2*e2}, v{ad}, v{100+2*(2*s+1)+h}")
    for r in range(44, 76):
        e(f"  v_mov_b32 v{r}, 0")
    for r in range(92, 96):
        e(f"  v_mov_b32 v{r}, 0x3f803f80")
    for r in range(96, 100):
        e(f"  v_mov_b32 v{r}, 0")
    e("  v_mov_b32 v22, 0xff800000")
    e("  s_waitcnt lgkmcnt(0)")
    for s in range(4):
        for e2 in range(4):
            e(f"  v_cndmask_b32 v{28+4*s+e2}, v{116+8*s+2*e2}, v{117+8*s+2*e2}, vcc")
    e("  s_mov_b32 s40, 0")
    e("  s_mov_b32 s41, 0")
    e("  s_mov_b32 s42, 131072")
    e("  s_mov_b32 s43, 65536")
    e("L_loop:")
    stamp()
    e("  s_waitcnt vmcnt(12)")
    e("  s_barrier")
    stamp()
    e("  s_cmp_ge_u32 s36, 8")
    e("  s_cbranch_scc1 L_skipL")
    e("  s_add_u32 s47, s45, s42")
    dma_pair("s47", "s[16:19]", "s43", 4, "s[20:23]", "s43", 6, NT)
    e("L_skipL:")
    if NOCOMP: e("  s_branch L_adv")
    for t in range(4):
        for s in range(4):
            r = 100 + 4 * (4 * t + s)
            e(f"  ds_read_b128 v[{r}:{r+3}], v{10+s} offset:{t*4096}")
    for t in range(4):
        for s in range(4):
            idx = 4 * t + s
            r = 100 + 4 * idx
            d = 76 + 4 * t
            q = 28 + 4 * s
            e(f"  s_waitcnt lgkmcnt(15)")
            c = "0" if s == 0 else f"v[{d}:{d+3}]"
            e(f"  v_mfma_f32_16x16x32_bf16 v[{d}:{d+3}], v[{r}:{r+3}], v[{q}:{q+3}], {c}")
            u, j = idx >> 3, idx & 7
            for hh in range(2):
                e(f"  ds_read_b64_tr_b16 v[{r+2*hh}:{r+2*hh+1}], v{14+j} offset:{16384 + u*8192 + hh*4096}")
    S = [76 + i for i in range(16)]
    e("  s_nop 5")
    e(f"  v_max3_f32 v24, v{S[0]}, v{S[1]}, v{S[2]}")
    e(f"  v_max3_f32 v25, v{S[3]}, v{S[4]}, v{S[5]}")
    e(f"  v_max3_f32 v24, v24, v{S[6]}, v{S[7]}")
    e(f"  v_max3_f32 v25, v25, v{S[8]}, v{S[9]}")
    e(f"  v_max3_f32 v24, v24, v{S[10]}, v{S[11]}")
    e(f"  v_max3_f32 v25, v25, v{S[12]}, v{S[13]}")
    e(f"  v_max3_f32 v24, v24, v{S[14]}, v{S[15]}")
    e(f"  v_max_f32 v24, v24, v25")
    e(f"  v_fma_f32 v25, v24, s44, -v22")
    e(f"  v_cmp_lt_f32 vcc, 0x41000000, v25")
    e(f"  s_cbranch_vccnz L_slow")
    e("L_back:")
    for i in range(16):
        e(f"  v_fma_f32 v{S[i]}, v{S[i]}, s44, -v22")
    for i in range(16):
        e(f"  v_exp_f32 v{S[i]}, v{S[i]}")
    e("  s_nop 0")
    for i in range(8):
        e(f"  v_cvt_pk_bf16_f32 v{76+i}, v{S[2*i]}, v{S[2*i+1]}")
    e("  s_nop 1")
    for u in range(2):
        p = 76 + 4 * u
        e(f"  v_mfma_f32_16x16x32_bf16 v[96:99], v[92:95], v[{p}:{p+3}], v[96:99]")
        for j in range(8):
            idx = 8 * u + j
            w = min(15, 30 - 2 * idx)
            e(f"  s_waitcnt lgkmcnt({w})")
            a = 100 + 4 * idx
            d = 44 + 4 * j
            e(f"  v_mfma_f32_16x16x32_bf16 v[{d}:{d+3}], v[{a}:{a+3}], v[{p}:{p+3}], v[{d}:{d+3}]")
    e("L_adv:")
    e("  s_mov_b32 s42, s41")
    e("  s_add_u32 s41, s41, 32768")
    e("  s_cmp_ge_u32 s41, 163840")
    e("  s_cselect_b32 s41, 0, s41")
    e("  s_sub_u32 s3, s41, s42")
    for r in range(10, 22):
        e(f"  v_add_u32 v{r}, s3, v{r}")
    e("  s_add_u32 s43, s43, 16384")
    e("  s_add_u32 s40, s40, 1")
    e("  s_cmp_lt_u32 s40, 16")
    e("  s_cbranch_scc1 L_loop")
    e("  v_rcp_f32 v23, v96")
    e("  s_lshl_b32 s3, s36, 4")
    e("  v_add_u32 v24, s3, v1")
    e("  v_lshlrev_b32 v24, 13, v24")
    e("  v_lshl_add_u32 v24, v2, 3, v24")
    e("  s_nop 4")
    for r in range(44, 76):
        e(f"  v_mul_f32 v{r}, v{r}, v23")
    for j in range(8):
        a = 44 + 4 * j
        e(f"  v_cvt_pk_bf16_f32 v{100+2*j}, v{a}, v{a+1}")
        e(f"  v_cvt_pk_bf16_f32 v{101+2*j}, v{a+2}, v{a+3}")
    for j in range(8):
        e(f"  buffer_store_dwordx2 v[{100+2*j}:{101+2*j}], v24, s[32:35], 0 offen offset:{32*j}")
    if STAMP:
        stamp()
        e("  s_mul_i32 s3, s2, 9")
        e("  s_add_u32 s3, s3, s36")
        e("  s_lshl_b32 s3, s3, 8")
        e(f"  s_add_u32 s3, s3, {STAMP_OFF}")
        e("  s_add_u32 s56, s12, s3")
        e("  s_addc_u32 s57, s13, 0")
        e("  s_mov_b32 s58, 256")
        e("  s_mov_b32 s59, 0x00020000")
        e("  v_lshlrev_b32 v24, 2, v0")
        e("  buffer_store_dword v164, v24, s[56:59], 0 offen")
    e("L_attn_done:")
    e("  s_endpgm")
    e("L_slow:")
    e(f"  v_mov_b32 v25, v24")
    e(f"  s_nop 1")
    e(f"  v_permlane32_swap_b32 v24, v25")
    e(f"  v_max_f32 v24, v24, v25")
    e(f"  v_mov_b32 v25, v24")
    e(f"  s_nop 1")
    e(f"  v_permlane16_swap_b32 v24, v25")
    e(f"  v_max_f32 v24, v24, v25")
    e(f"  v_mul_f32 v24, s44, v24")
    e(f"  v_max_f32 v24, v24, v22")
    e(f"  v_sub_f32 v25, v22, v24")
    e(f"  v_exp_f32 v25, v25")
    e(f"  v_mov_b32 v22, v24")
    for r in list(range(44, 76)) + list(range(96, 100)):
        e(f"  v_mul_f32 v{r}, v{r}, v25")
    e("  s_branch L_back")

def gen_oproj():
    e(".globl oproj_kernel")
    e(".p2align 8")
    e(".type oproj_kernel,@function")
    e("oproj_kernel:")
    e("  s_cmp_ge_u32 s2, 256")
    e("  s_cbranch_scc1 L_op_done")
    e("  s_load_dwordx2 s[4:5], s[0:1], 32")
    e("  s_load_dwordx2 s[8:9], s[0:1], 56")
    lane_setup()
    e("  s_and_b32 s37, s2, 7")
    e("  s_lshr_b32 s38, s2, 3")
    e("  s_and_b32 s39, s38, 3")
    e("  s_lshr_b32 s40, s38, 2")
    e("  s_lshl_b32 s3, s36, 3")
    e("  v_add_u32 v3, s3, v2")
    e("  v_add_u32 v24, 4, v3")
    w_dma_voffs(10, 8)
    e("  s_lshl_b32 s3, s36, 4")
    e("  v_add_u32 v25, s3, v1")
    e("  v_lshlrev_b32 v25, 13, v25")
    e("  v_lshl_add_u32 v23, v2, 5, v25")
    e("  s_waitcnt lgkmcnt(0)")
    e("  s_lshl_b32 s3, s37, 19")
    e("  s_lshl_b32 s41, s39, 8")
    e("  s_add_u32 s3, s3, s41")
    e("  s_add_u32 s24, s4, s3")
    e("  s_addc_u32 s25, s5, 0")
    e("  s_sub_u32 s26, 4194304, s3")
    e("  s_mov_b32 s27, 0x00020000")
    e("  s_mul_i32 s3, s40, 1179648")
    e("  s_lshl_b32 s41, s37, 10")
    e("  s_add_u32 s3, s3, s41")
    e("  s_add_u32 s28, s8, s3")
    e("  s_addc_u32 s29, s9, 0")
    e("  s_sub_u32 s30, 9437184, s3")
    e("  s_mov_b32 s31, 0x00020000")
    e("  s_lshl_b32 s3, s37, 5")
    e("  s_add_u32 s3, s3, s38")
    e("  s_mul_i32 s3, s3, 9")
    e("  s_add_u32 s3, s3, s36")
    e("  s_lshl_b32 s3, s3, 13")
    e(f"  s_add_u32 s3, s3, {PART_OFF}")
    e("  s_add_u32 s32, s8, s3")
    e("  s_addc_u32 s33, s9, 0")
    e("  s_mov_b32 s34, 8192")
    e("  s_mov_b32 s35, 0x00020000")
    e("  s_lshl_b32 s45, s36, 11")
    for ks in range(16):
        r = xreg(ks)
        e(f"  buffer_load_dwordx4 v[{r}:{r+3}], v23, s[28:31], 0 offen offset:{128*(ks>>1) + 16*(ks&1)}")
    e("  s_cmp_ge_u32 s36, 8")
    e("  s_cbranch_scc1 L_op_w8")
    for p in range(4):
        e(f"  s_add_u32 s47, s45, {p*32768}")
        e(f"  s_mov_b32 s48, {(2*p)*65536}")
        e(f"  s_mov_b32 s49, {(2*p+1)*65536}")
        dma_pair("s47", "s[24:27]", "s48", 8, "s[24:27]", "s49", 8)
    e("  s_branch L_op_go")
    e("L_op_w8:")
    e("  s_waitcnt vmcnt(0)")
    e("L_op_go:")
    tr_addr_setup()
    for r in range(44, 76):
        e(f"  v_mov_b32 v{r}, 0")
    for p in range(4):
        e(f"  s_waitcnt vmcnt({4*(3-p)})")
        e("  s_barrier")
        if p > 0:
            for j in range(8):
                e(f"  v_add_u32 v{14+j}, 0x8000, v{14+j}")
        gemm_pair(p, 44)
    e("  v_lshlrev_b32 v24, 4, v0")
    e("  v_add_u32 v25, 4096, v24")
    e("  s_nop 7")
    for j in range(8):
        a = 44 + 4 * j
        e(f"  buffer_store_dwordx4 v[{a}:{a+3}], v{24 + (j>>2)}, s[32:35], 0 offen offset:{1024*(j&3)}")
    e("L_op_done:")
    e("  s_endpgm")

def gen_reduce():
    e(".globl reduce_kernel")
    e(".p2align 8")
    e(".type reduce_kernel,@function")
    e("reduce_kernel:")
    e("  s_cmp_ge_u32 s2, 256")
    e("  s_cbranch_scc1 L_rd_done")
    e("  s_load_dwordx2 s[4:5], s[0:1], 40")
    e("  s_load_dwordx2 s[8:9], s[0:1], 56")
    lane_setup()
    e("  s_and_b32 s37, s2, 7")
    e("  s_lshr_b32 s38, s2, 3")
    e("  s_and_b32 s39, s38, 3")
    e("  s_lshr_b32 s40, s38, 2")
    e("  v_lshlrev_b32 v3, 4, v0")
    e("  s_waitcnt lgkmcnt(0)")
    e("  s_mul_i32 s3, s38, 9")
    e("  s_add_u32 s3, s3, s36")
    e("  s_lshl_b32 s3, s3, 3")
    e("  s_add_u32 s3, s3, s37")
    e("  s_lshl_b32 s3, s3, 10")
    e(f"  s_add_u32 s3, s3, {PART_OFF}")
    e("  s_add_u32 s12, s8, s3")
    e("  s_addc_u32 s13, s9, 0")
    e(f"  s_mov_b32 s14, {7*2359296 + 1024}")
    e("  s_mov_b32 s15, 0x00020000")
    for ks in range(8):
        e(f"  s_mov_b32 s{20+ks}, {ks*2359296}")
    for ks in range(8):
        e(f"  buffer_load_dwordx4 v[{8+4*ks}:{11+4*ks}], v3, s[12:15], s{20+ks} offen")
    e("  s_mul_i32 s3, s40, 144")
    e("  s_lshl_b32 s41, s36, 4")
    e("  s_add_u32 s3, s3, s41")
    e("  s_lshl_b32 s3, s3, 10")
    e("  s_lshl_b32 s41, s39, 8")
    e("  s_add_u32 s3, s3, s41")
    e("  s_lshl_b32 s41, s37, 5")
    e("  s_add_u32 s3, s3, s41")
    e("  s_add_u32 s16, s4, s3")
    e("  s_addc_u32 s17, s5, 0")
    e("  s_sub_u32 s18, 1179648, s3")
    e("  s_mov_b32 s19, 0x00020000")
    e("  v_lshlrev_b32 v4, 10, v1")
    e("  v_lshl_add_u32 v4, v2, 3, v4")
    for ks in range(1, 8):
        e(f"  s_waitcnt vmcnt({7-ks})")
        for r in range(4):
            e(f"  v_add_f32 v{8+r}, v{8+r}, v{8+4*ks+r}")
    e("  v_cvt_pk_bf16_f32 v8, v8, v9")
    e("  v_cvt_pk_bf16_f32 v9, v10, v11")
    e("  buffer_store_dwordx2 v[8:9], v4, s[16:19], 0 offen")
    e("L_rd_done:")
    e("  s_endpgm")

def desc(name, vgpr, sgpr=64):
    e(f".amdhsa_kernel {name}")
    e(f"  .amdhsa_next_free_vgpr {vgpr}")
    e(f"  .amdhsa_next_free_sgpr {sgpr}")
    e(f"  .amdhsa_accum_offset {(vgpr+3)//4*4}")
    e("  .amdhsa_group_segment_fixed_size 0")
    e("  .amdhsa_kernarg_size 64")
    e("  .amdhsa_user_sgpr_count 2")
    e("  .amdhsa_user_sgpr_kernarg_segment_ptr 1")
    e("  .amdhsa_system_sgpr_workgroup_id_x 1")
    e(".end_amdhsa_kernel")

out.append(HEADER)
gen_attn()
gen_oproj()
gen_reduce()
e('.section .rodata,"a"')
e(".p2align 6")
desc("attn_kernel", 168 if STAMP else 164)
e(".p2align 6")
desc("oproj_kernel", 164)
e(".p2align 6")
desc("reduce_kernel", 40)
import re
for ln in out:
    m = re.search(r"buffer_.*offset:(\d+)", ln)
    if m: assert int(m.group(1)) < 4096, ln
open(sys.argv[1], "w").write("\n".join(out) + "\n")
```

```python
import math, sys, struct

out = []
def e(s=""):
    out.append(s)

ARGS = sys.argv[2:]
STAMP = "stamp" in ARGS
NOCOMP = "nocomp" in ARGS
NT = "" if "nont" in ARGS else " nt"

HEADER = """; Kernarg layout for this problem (64 bytes, ptrs only, base s[0:1]):
;   offset  16: d_in[2] v_cache  shape=(8, 32, 1024, 128) dtype=bfloat16
; @launch kernel=attn_kernel grid=(256,1,1) block=(576,1,1) lds=163840
; @launch kernel=oproj_kernel grid=(256,1,1) block=(576,1,1) lds=131072
; @launch kernel=reduce_kernel grid=(256,1,1) block=(576,1,1) lds=0
.amdgcn_target "amdgcn-amd-amdhsa--gfx950"
.text
"""

def f2u(f):
    return struct.unpack("<I", struct.pack("<f", f))[0]

CSCALE = (128 ** -0.5) * math.log2(math.e)
PART_OFF = 16777216
STAMP_OFF = 67108864

def stamp():
    if not STAMP: return
    e("  s_memtime s[52:53]")
    e("  s_waitcnt lgkmcnt(0)")
    e("  v_mov_b32 v165, s52")
    e("  v_cmp_eq_u32 vcc, s50, v166")
    e("  s_nop 1")
    e("  v_cndmask_b32 v164, v164, v165, vcc")
    e("  s_add_u32 s50, s50, 1")

def xreg(ks):
    if ks < 4: return 28 + 4 * ks
    if ks < 10: return 76 + 4 * (ks - 4)
    return 140 + 4 * (ks - 10)

uid = [0]
def dma_pair(slot, srdA, soffA, vA, srdB, soffB, vB, nt=""):
    e(f"  s_mov_b32 m0, {slot}")
    e(f"  s_add_u32 s46, {slot}, 1024")
    e(f"  buffer_load_dwordx4 v{vA}, {srdA}, {soffA} offen{nt} lds")
    e(f"  s_mov_b32 m0, s46")
    e(f"  s_add_u32 s46, {slot}, 16384")
    e(f"  buffer_load_dwordx4 v{vA+1}, {srdA}, {soffA} offen{nt} lds")
    e(f"  s_mov_b32 m0, s46")
    e(f"  s_add_u32 s46, {slot}, 17408")
    e(f"  buffer_load_dwordx4 v{vB}, {srdB}, {soffB} offen{nt} lds")
    e(f"  s_mov_b32 m0, s46")
    e(f"  s_nop 0")
    e(f"  buffer_load_dwordx4 v{vB+1}, {srdB}, {soffB} offen{nt} lds")

def lane_setup():
    e("  v_lshrrev_b32 v1, 6, v0")
    e("  v_and_b32 v0, 63, v0")
    e("  s_nop 0")
    e("  v_readfirstlane_b32 s36, v1")
    e("  v_and_b32 v1, 15, v0")
    e("  v_lshrrev_b32 v2, 4, v0")

def w_dma_voffs(rowshift, vdst):
    for n, vr in ((0, "v3"), (1, "v24")):
        e(f"  v_and_b32 v25, 3, {vr}")
        e(f"  v_bfe_u32 v27, {vr}, 4, 1")
        e(f"  v_lshl_add_u32 v25, v27, 2, v25")
        e(f"  v_lshlrev_b32 v25, 1, v25")
        e(f"  v_xor_b32 v25, v25, v1")
        e(f"  v_lshlrev_b32 v25, 4, v25")
        e(f"  v_lshl_add_u32 v{vdst+n}, {vr}, {rowshift}, v25")

def tr_addr_setup(mode="x"):
    e("  v_bfe_u32 v24, v0, 2, 2")
    e("  v_and_b32 v25, 3, v0")
    e("  v_and_b32 v26, 1, v2")
    if mode == "x":
        e("  v_lshl_add_u32 v27, v2, 4, v24")
    else:
        e("  v_lshl_add_u32 v27, v26, 4, v24")
        e("  v_lshrrev_b32 v3, 1, v2")
        e("  v_lshl_add_u32 v27, v3, 3, v27")
    e("  v_lshl_add_u32 v26, v26, 2, v24")
    e("  v_lshlrev_b32 v27, 8, v27")
    e("  v_lshrrev_b32 v3, 1, v25")
    e("  v_lshl_add_u32 v27, v3, 4, v27")
    e("  v_and_b32 v3, 1, v25")
    e("  v_lshl_add_u32 v27, v3, 3, v27")
    for j in range(8):
        e(f"  v_xor_b32 v3, {j}, v26")
        e(f"  v_lshl_add_u32 v{14+j}, v3, 5, v27")

def gemm_pair(p, acc0, hbrows=8):
    def reads(kidx, j):
        tile, hb = kidx >> 1, kidx & 1
        for hh in range(2):
            off = tile * 16384 + (hbrows * hb + 4 * hh) * 256
            r = 100 + 4 * j + 2 * hh
            e(f"  ds_read_b64_tr_b16 v[{r}:{r+1}], v{14+j} offset:{off}")
    for j in range(8):
        reads(0, j)
    for kidx in range(4):
        xr = xreg(4 * p + kidx)
        for j in range(8):
            e(f"  s_waitcnt lgkmcnt({14 if kidx < 3 else 14-2*j})")
            a = 100 + 4 * j
            d = acc0 + 4 * j
            e(f"  v_mfma_f32_16x16x32_bf16 v[{d}:{d+3}], v[{a}:{a+3}], v[{xr}:{xr+3}], v[{d}:{d+3}]")
            if kidx < 3:
                reads(kidx + 1, j)

def gen_attn():
    e(".globl attn_kernel")
    e(".p2align 8")
    e(".type attn_kernel,@function")
    e("attn_kernel:")
    e("  s_cmp_ge_u32 s2, 256")
    e("  s_cbranch_scc1 L_attn_done")
    e("  s_load_dwordx8 s[4:11], s[0:1], 0")
    e("  s_load_dwordx2 s[12:13], s[0:1], 56")
    if STAMP:
        e("  s_mov_b32 s50, 0")
        e("  v_mov_b32 v164, 0")
        e("  v_and_b32 v166, 63, v0")
        stamp()
    lane_setup()
    e("  s_and_b32 s3, s2, 7")
    e("  s_lshr_b32 s37, s2, 3")
    e("  s_and_b32 s38, s37, 3")
    e("  s_lshl_b32 s3, s3, 2")
    e("  s_add_u32 s38, s38, s3")
    e("  s_lshr_b32 s37, s37, 2")
    e("  s_lshl_b32 s3, s36, 3")
    e("  v_add_u32 v3, s3, v2")
    e("  v_add_u32 v24, 4, v3")
    for n, vr in ((0, "v3"), (1, "v24")):
        e(f"  v_and_b32 v25, 7, {vr}")
        e(f"  v_lshlrev_b32 v25, 1, v25")
        e(f"  v_xor_b32 v25, v25, v1")
        e(f"  v_lshlrev_b32 v25, 4, v25")
        e(f"  v_lshl_add_u32 v{6+n}, {vr}, 8, v25")
        e(f"  v_and_b32 v25, 15, {vr}")
        e(f"  v_xor_b32 v25, v25, v1")
        e(f"  v_lshlrev_b32 v25, 4, v25")
        e(f"  v_lshl_add_u32 v{4+n}, {vr}, 8, v25")
    w_dma_voffs(13, 8)
    e("  s_lshl_b32 s3, s36, 4")
    e("  v_add_u32 v25, s3, v1")
    e("  v_lshlrev_b32 v25, 10, v25")
    e("  v_lshl_add_u32 v23, v2, 5, v25")
    e("  s_waitcnt lgkmcnt(0)")
    e("  s_mul_i32 s40, s37, 147456")
    e("  s_add_u32 s28, s4, s40")
    e("  s_addc_u32 s29, s5, 0")
    e("  s_mov_b32 s30, 147456")
    e("  s_mov_b32 s31, 0x00020000")
    def xloads(c):
        for ks in range(4 * c, 4 * c + 4):
            r = xreg(ks)
            e(f"  buffer_load_dwordx4 v[{r}:{r+3}], v23, s[28:31], 0 offen offset:{128*(ks>>1) + 16*(ks&1)}")
    xloads(0)
    e("  s_lshl_b32 s39, s38, 8")
    e("  s_add_u32 s24, s10, s39")
    e("  s_addc_u32 s25, s11, 0")
    e("  s_sub_u32 s26, 4194304, s39")
    e("  s_mov_b32 s27, 0x00020000")
    e("  s_lshl_b32 s45, s36, 11")
    e("  s_lshl_b32 s3, s37, 5")
    e("  s_add_u32 s3, s3, s38")
    e("  s_lshl_b32 s39, s3, 18")
    e("  s_lshr_b32 s40, s3, 14")
    e("  s_add_u32 s16, s6, s39")
    e("  s_addc_u32 s17, s7, s40")
    e("  s_mov_b32 s18, 262144")
    e("  s_mov_b32 s19, 0x00020000")
    e("  s_add_u32 s20, s8, s39")
    e("  s_addc_u32 s21, s9, s40")
    e("  s_mov_b32 s22, 262144")
    e("  s_mov_b32 s23, 0x00020000")
    def issue_W(p, phys, guard=True):
        uid[0] += 1
        if guard:
            e("  s_cmp_ge_u32 s36, 8")
            e(f"  s_cbranch_scc1 L_skip{uid[0]}")
        e(f"  s_add_u32 s47, s45, {phys*32768}")
        e(f"  s_mov_b32 s48, {(2*p)*524288}")
        e(f"  s_mov_b32 s49, {(2*p+1)*524288}")
        dma_pair("s47", "s[24:27]", "s48", 8, "s[24:27]", "s49", 8)
        if guard:
            e(f"L_skip{uid[0]}:")
    def issue_KV_imm(j, phys, guard=True):
        uid[0] += 1
        if guard:
            e("  s_cmp_ge_u32 s36, 8")
            e(f"  s_cbranch_scc1 L_skip{uid[0]}")
        e(f"  s_add_u32 s47, s45, {phys*32768}")
        e(f"  s_mov_b32 s48, {j*16384}")
        dma_pair("s47", "s[16:19]", "s48", 4, "s[20:23]", "s48", 6, NT)
        if guard:
            e(f"L_skip{uid[0]}:")
    e("  s_cmp_ge_u32 s36, 8")
    e("  s_cbranch_scc1 L_pro8")
    issue_W(0, 4, False)
    xloads(1)
    issue_W(1, 2, False)
    issue_KV_imm(0, 0, False)
    xloads(2)
    issue_W(2, 3, False)
    issue_KV_imm(1, 1, False)
    xloads(3)
    e("  s_branch L_pro_done")
    e("L_pro8:")
    xloads(1)
    xloads(2)
    xloads(3)
    e("L_pro_done:")
    e("  s_mul_i32 s40, s37, 9")
    e("  s_add_u32 s40, s40, s36")
    e("  s_lshl_b32 s40, s40, 7")
    e("  s_lshl_b32 s39, s38, 2")
    e("  s_add_u32 s40, s40, s39")
    e("  s_lshl_b32 s40, s40, 10")
    e("  s_add_u32 s32, s12, s40")
    e("  s_addc_u32 s33, s13, 0")
    e("  s_mov_b32 s34, 4096")
    e("  s_mov_b32 s35, 0x00020000")
    e(f"  s_mov_b32 s44, 0x{f2u(CSCALE):08x}")
    tr_addr_setup("x")
    for r in range(44, 76):
        e(f"  v_mov_b32 v{r}, 0")
    wphys = [4, 2, 3, 4]
    wwait = [28, 20, 12, 4]
    prev = 0
    for p in range(4):
        stamp()
        e("  s_cmp_ge_u32 s36, 8")
        e(f"  s_cbranch_scc1 L_w8_{p}")
        e(f"  s_waitcnt vmcnt({wwait[p]})")
        e(f"  s_branch L_wj_{p}")
        e(f"L_w8_{p}:")
        e(f"  s_waitcnt vmcnt({4*(3-p)})")
        e(f"L_wj_{p}:")
        e("  s_barrier")
        stamp()
        if p == 1: issue_W(3, 4)
        if p == 2: issue_KV_imm(2, 2)
        if p == 3: issue_KV_imm(3, 3)
        delta = wphys[p] * 32768 - prev
        prev = wphys[p] * 32768
        e(f"  s_mov_b32 s3, {delta & 0xffffffff}")
        for j in range(8):
            e(f"  v_add_u32 v{14+j}, s3, v{14+j}")
        gemm_pair(p, 44)
    e(f"  v_mul_u32_u24 v3, {12*256}, v2")
    e(f"  v_add_u32 v3, {prev}, v3")
    for j in range(8):
        e(f"  v_sub_u32 v{14+j}, v{14+j}, v3")
    e("  v_and_b32 v26, 1, v2")
    e("  v_lshrrev_b32 v27, 1, v2")
    e("  v_lshl_add_u32 v26, v26, 1, v27")
    e("  v_xor_b32 v26, v26, v1")
    for s in range(4):
        e(f"  v_xor_b32 v3, {4*s}, v26")
        e(f"  v_lshlrev_b32 v3, 4, v3")
        e(f"  v_lshl_add_u32 v{10+s}, v1, 8, v3")
    e("  s_waitcnt vmcnt(12)")
    e("  s_barrier")
    issue_KV_imm(4, 4)
    for t in range(4):
        for s in range(4):
            r = 100 + 4 * (4 * t + s)
            e(f"  ds_read_b128 v[{r}:{r+3}], v{10+s} offset:{t*4096}")
    for j in range(8):
        a = 44 + 4 * j
        e(f"  v_cvt_pk_bf16_f32 v{28+2*j}, v{a}, v{a+1}")
        e(f"  v_cvt_pk_bf16_f32 v{29+2*j}, v{a+2}, v{a+3}")
    for r in range(44, 76):
        e(f"  v_mov_b32 v{r}, 0")
    for s in range(4):
        e(f"  v_permlane16_swap_b32 v{28+4*s}, v{30+4*s}")
        e(f"  v_permlane16_swap_b32 v{29+4*s}, v{31+4*s}")
    for r in range(92, 96):
        e(f"  v_mov_b32 v{r}, 0x3f803f80")
    for r in range(96, 100):
        e(f"  v_mov_b32 v{r}, 0")
    e("  v_mov_b32 v22, 0xff800000")
    e("  s_mov_b32 s40, 0")
    e("  s_mov_b32 s41, 0")
    e("  s_mov_b32 s43, 81920")
    e("L_loop:")
    stamp()
    if NOCOMP: e("  s_branch L_mid")
    for t in range(4):
        for s in range(4):
            idx = 4 * t + s
            r = 100 + 4 * idx
            d = 76 + 4 * t
            q = 28 + 4 * s
            e(f"  s_waitcnt lgkmcnt(15)")
            c = "0" if s == 0 else f"v[{d}:{d+3}]"
            e(f"  v_mfma_f32_16x16x32_bf16 v[{d}:{d+3}], v[{r}:{r+3}], v[{q}:{q+3}], {c}")
            u, j = idx >> 3, idx & 7
            for hh in range(2):
                e(f"  ds_read_b64_tr_b16 v[{r+2*hh}:{r+2*hh+1}], v{14+j} offset:{16384 + u*8192 + hh*4096}")
    S = [76 + i for i in range(16)]
    e("  s_add_u32 s42, s41, 32768")
    e("  s_cmp_ge_u32 s42, 163840")
    e("  s_cselect_b32 s42, 0, s42")
    e("  s_sub_u32 s3, s42, s41")
    for r in range(10, 14):
        e(f"  v_add_u32 v{r}, s3, v{r}")
    e(f"  v_max3_f32 v24, v{S[0]}, v{S[1]}, v{S[2]}")
    e(f"  v_max3_f32 v25, v{S[3]}, v{S[4]}, v{S[5]}")
    e(f"  v_max3_f32 v24, v24, v{S[6]}, v{S[7]}")
    e(f"  v_max3_f32 v25, v25, v{S[8]}, v{S[9]}")
    e(f"  v_max3_f32 v24, v24, v{S[10]}, v{S[11]}")
    e(f"  v_max3_f32 v25, v25, v{S[12]}, v{S[13]}")
    e(f"  v_max3_f32 v24, v24, v{S[14]}, v{S[15]}")
    e(f"  v_max_f32 v24, v24, v25")
    e(f"  v_fma_f32 v25, v24, s44, -v22")
    e(f"  v_cmp_lt_f32 vcc, 0x41000000, v25")
    e(f"  s_cbranch_vccnz L_slow")
    e("L_back:")
    for i in range(16):
        e(f"  v_fma_f32 v{S[i]}, v{S[i]}, s44, -v22")
    for i in range(16):
        e(f"  v_exp_f32 v{S[i]}, v{S[i]}")
    for r in range(14, 22):
        e(f"  v_add_u32 v{r}, s3, v{r}")
    for i in range(8):
        e(f"  v_cvt_pk_bf16_f32 v{76+i}, v{S[2*i]}, v{S[2*i+1]}")
    e("L_mid:")
    stamp()
    e("  s_waitcnt vmcnt(12) lgkmcnt(0)")
    e("  s_barrier")
    stamp()
    e("  s_cmp_ge_u32 s36, 8")
    e("  s_cbranch_scc1 L_skipL")
    e("  s_add_u32 s47, s45, s41")
    dma_pair("s47", "s[16:19]", "s43", 4, "s[20:23]", "s43", 6, NT)
    e("L_skipL:")
    if NOCOMP: e("  s_branch L_adv")
    for u in range(2):
        p = 76 + 4 * u
        e(f"  v_mfma_f32_16x16x32_bf16 v[96:99], v[92:95], v[{p}:{p+3}], v[96:99]")
        for j in range(8):
            idx = 8 * u + j
            a = 100 + 4 * idx
            d = 44 + 4 * j
            e(f"  v_mfma_f32_16x16x32_bf16 v[{d}:{d+3}], v[{a}:{a+3}], v[{p}:{p+3}], v[{d}:{d+3}]")
            t, s = idx >> 2, idx & 3
            e(f"  ds_read_b128 v[{a}:{a+3}], v{10+s} offset:{t*4096}")
    e("L_adv:")
    e("  s_mov_b32 s41, s42")
    e("  s_add_u32 s43, s43, 16384")
    e("  s_add_u32 s40, s40, 1")
    e("  s_cmp_lt_u32 s40, 16")
    e("  s_cbranch_scc1 L_loop")
    e("  v_lshlrev_b32 v24, 4, v0")
    e("  s_nop 6")
    e("  v_rcp_f32 v23, v96")
    e("  s_nop 0")
    for r in range(44, 76):
        e(f"  v_mul_f32 v{r}, v{r}, v23")
    for j in range(8):
        a = 44 + 4 * j
        e(f"  v_cvt_pk_bf16_f32 v{28+2*j}, v{a}, v{a+1}")
        e(f"  v_cvt_pk_bf16_f32 v{29+2*j}, v{a+2}, v{a+3}")
    e("  s_nop 1")
    for s in range(4):
        e(f"  v_permlane16_swap_b32 v{28+4*s}, v{30+4*s}")
        e(f"  v_permlane16_swap_b32 v{29+4*s}, v{31+4*s}")
    for s in range(4):
        e(f"  buffer_store_dwordx4 v[{28+4*s}:{31+4*s}], v24, s[32:35], 0 offen offset:{1024*s}")
    if STAMP:
        stamp()
        e("L_stamp_out:")
        e("  s_mul_i32 s3, s2, 9")
        e("  s_add_u32 s3, s3, s36")
        e("  s_lshl_b32 s3, s3, 8")
        e(f"  s_add_u32 s3, s3, {STAMP_OFF}")
        e("  s_add_u32 s56, s12, s3")
        e("  s_addc_u32 s57, s13, 0")
        e("  s_mov_b32 s58, 256")
        e("  s_mov_b32 s59, 0x00020000")
        e("  v_lshlrev_b32 v24, 2, v0")
        e("  buffer_store_dword v164, v24, s[56:59], 0 offen")
    e("L_attn_done:")
    e("  s_endpgm")
    e("L_slow:")
    e(f"  v_mov_b32 v25, v24")
    e(f"  s_nop 1")
    e(f"  v_permlane32_swap_b32 v24, v25")
    e(f"  v_max_f32 v24, v24, v25")
    e(f"  v_mov_b32 v25, v24")
    e(f"  s_nop 1")
    e(f"  v_permlane16_swap_b32 v24, v25")
    e(f"  v_max_f32 v24, v24, v25")
    e(f"  v_mul_f32 v24, s44, v24")
    e(f"  v_max_f32 v24, v24, v22")
    e(f"  v_sub_f32 v25, v22, v24")
    e(f"  v_exp_f32 v25, v25")
    e(f"  v_mov_b32 v22, v24")
    for r in list(range(44, 76)) + list(range(96, 100)):
        e(f"  v_mul_f32 v{r}, v{r}, v25")
    e("  s_branch L_back")

def gen_oproj():
    e(".globl oproj_kernel")
    e(".p2align 8")
    e(".type oproj_kernel,@function")
    e("oproj_kernel:")
    e("  s_cmp_ge_u32 s2, 256")
    e("  s_cbranch_scc1 L_op_done")
    e("  s_load_dwordx2 s[4:5], s[0:1], 32")
    e("  s_load_dwordx2 s[8:9], s[0:1], 56")
    lane_setup()
    e("  s_and_b32 s37, s2, 7")
    e("  s_lshr_b32 s38, s2, 3")
    e("  s_and_b32 s39, s38, 3")
    e("  s_lshr_b32 s40, s38, 2")
    e("  s_lshl_b32 s3, s36, 3")
    e("  v_add_u32 v3, s3, v2")
    e("  v_add_u32 v24, 4, v3")
    w_dma_voffs(10, 8)
    e("  v_lshlrev_b32 v23, 4, v0")
    e("  v_add_u32 v22, 4096, v23")
    e("  s_waitcnt lgkmcnt(0)")
    e("  s_mul_i32 s3, s40, 9")
    e("  s_add_u32 s3, s3, s36")
    e("  s_lshl_b32 s3, s3, 7")
    e("  s_lshl_b32 s41, s37, 4")
    e("  s_add_u32 s3, s3, s41")
    e("  s_lshl_b32 s3, s3, 10")
    e("  s_add_u32 s28, s8, s3")
    e("  s_addc_u32 s29, s9, 0")
    e("  s_mov_b32 s30, 16384")
    e("  s_mov_b32 s31, 0x00020000")
    e("  s_lshl_b32 s3, s37, 19")
    e("  s_lshl_b32 s41, s39, 8")
    e("  s_add_u32 s3, s3, s41")
    e("  s_add_u32 s24, s4, s3")
    e("  s_addc_u32 s25, s5, 0")
    e("  s_sub_u32 s26, 4194304, s3")
    e("  s_mov_b32 s27, 0x00020000")
    e("  s_lshl_b32 s45, s36, 11")
    e("  s_mov_b32 s50, 8192")
    def oloads(c):
        for ks in range(4 * c, 4 * c + 4):
            r = xreg(ks)
            so = "0" if ks < 8 else "s50"
            e(f"  buffer_load_dwordx4 v[{r}:{r+3}], v{23 - ((ks>>2)&1)}, s[28:31], {so} offen offset:{1024*(ks&3)}")
    e("  s_cmp_ge_u32 s36, 8")
    e("  s_cbranch_scc1 L_op_w8")
    for p in range(4):
        oloads(p)
        e(f"  s_add_u32 s47, s45, {p*32768}")
        e(f"  s_mov_b32 s48, {(2*p)*65536}")
        e(f"  s_mov_b32 s49, {(2*p+1)*65536}")
        dma_pair("s47", "s[24:27]", "s48", 8, "s[24:27]", "s49", 8)
    e("  s_branch L_op_go")
    e("L_op_w8:")
    for p in range(4):
        oloads(p)
    e("L_op_go:")
    e("  s_lshl_b32 s3, s37, 5")
    e("  s_add_u32 s3, s3, s38")
    e("  s_mul_i32 s3, s3, 9")
    e("  s_add_u32 s3, s3, s36")
    e("  s_lshl_b32 s3, s3, 13")
    e(f"  s_add_u32 s3, s3, {PART_OFF}")
    e("  s_add_u32 s32, s8, s3")
    e("  s_addc_u32 s33, s9, 0")
    e("  s_mov_b32 s34, 8192")
    e("  s_mov_b32 s35, 0x00020000")
    tr_addr_setup("o")
    for r in range(44, 76):
        e(f"  v_mov_b32 v{r}, 0")
    for p in range(4):
        e("  s_cmp_ge_u32 s36, 8")
        e(f"  s_cbranch_scc1 L_ow8_{p}")
        e(f"  s_waitcnt vmcnt({8*(3-p)})")
        e(f"  s_branch L_owj_{p}")
        e(f"L_ow8_{p}:")
        e(f"  s_waitcnt vmcnt({4*(3-p)})")
        e(f"L_owj_{p}:")
        e("  s_barrier")
        if p > 0:
            for j in range(8):
                e(f"  v_add_u32 v{14+j}, 0x8000, v{14+j}")
        gemm_pair(p, 44, 32)
    e("  s_nop 7")
    for j in range(8):
        a = 44 + 4 * j
        e(f"  buffer_store_dwordx4 v[{a}:{a+3}], v{23 - (j>>2)}, s[32:35], 0 offen offset:{1024*(j&3)}")
    e("L_op_done:")
    e("  s_endpgm")

def gen_reduce():
    e(".globl reduce_kernel")
    e(".p2align 8")
    e(".type reduce_kernel,@function")
    e("reduce_kernel:")
    e("  s_cmp_ge_u32 s2, 256")
    e("  s_cbranch_scc1 L_rd_done")
    e("  s_load_dwordx2 s[4:5], s[0:1], 40")
    e("  s_load_dwordx2 s[8:9], s[0:1], 56")
    lane_setup()
    e("  s_and_b32 s37, s2, 7")
    e("  s_lshr_b32 s38, s2, 3")
    e("  s_and_b32 s39, s38, 3")
    e("  s_lshr_b32 s40, s38, 2")
    e("  v_lshlrev_b32 v3, 4, v0")
    e("  s_waitcnt lgkmcnt(0)")
    e("  s_mul_i32 s3, s38, 9")
    e("  s_add_u32 s3, s3, s36")
    e("  s_lshl_b32 s3, s3, 3")
    e("  s_add_u32 s3, s3, s37")
    e("  s_lshl_b32 s3, s3, 10")
    e(f"  s_add_u32 s3, s3, {PART_OFF}")
    e("  s_add_u32 s12, s8, s3")
    e("  s_addc_u32 s13, s9, 0")
    e(f"  s_mov_b32 s14, {7*2359296 + 1024}")
    e("  s_mov_b32 s15, 0x00020000")
    for ks in range(8):
        e(f"  s_mov_b32 s{20+ks}, {ks*2359296}")
    for ks in range(8):
        e(f"  buffer_load_dwordx4 v[{8+4*ks}:{11+4*ks}], v3, s[12:15], s{20+ks} offen")
    e("  s_mul_i32 s3, s40, 144")
    e("  s_lshl_b32 s41, s36, 4")
    e("  s_add_u32 s3, s3, s41")
    e("  s_lshl_b32 s3, s3, 10")
    e("  s_lshl_b32 s41, s39, 8")
    e("  s_add_u32 s3, s3, s41")
    e("  s_lshl_b32 s41, s37, 5")
    e("  s_add_u32 s3, s3, s41")
    e("  s_add_u32 s16, s4, s3")
    e("  s_addc_u32 s17, s5, 0")
    e("  s_sub_u32 s18, 1179648, s3")
    e("  s_mov_b32 s19, 0x00020000")
    e("  v_lshlrev_b32 v4, 10, v1")
    e("  v_lshl_add_u32 v4, v2, 3, v4")
    for ks in range(1, 8):
        e(f"  s_waitcnt vmcnt({7-ks})")
        for r in range(4):
            e(f"  v_add_f32 v{8+r}, v{8+r}, v{8+4*ks+r}")
    e("  v_cvt_pk_bf16_f32 v8, v8, v9")
    e("  v_cvt_pk_bf16_f32 v9, v10, v11")
    e("  buffer_store_dwordx2 v[8:9], v4, s[16:19], 0 offen")
    e("L_rd_done:")
    e("  s_endpgm")

def desc(name, vgpr, sgpr=64):
    e(f".amdhsa_kernel {name}")
    e(f"  .amdhsa_next_free_vgpr {vgpr}")
    e(f"  .amdhsa_next_free_sgpr {sgpr}")
    e(f"  .amdhsa_accum_offset {(vgpr+3)//4*4}")
    e("  .amdhsa_group_segment_fixed_size 0")
    e("  .amdhsa_kernarg_size 64")
    e("  .amdhsa_user_sgpr_count 2")
    e("  .amdhsa_user_sgpr_kernarg_segment_ptr 1")
    e("  .amdhsa_system_sgpr_workgroup_id_x 1")
    e(".end_amdhsa_kernel")

out.append(HEADER)
gen_attn()
gen_oproj()
gen_reduce()
e('.section .rodata,"a"')
e(".p2align 6")
desc("attn_kernel", 168 if STAMP else 164)
e(".p2align 6")
desc("oproj_kernel", 164)
e(".p2align 6")
desc("reduce_kernel", 40)
import re
def strip_loop(kind):
    global out
    res = []; inside = False
    for ln in out:
        if ln.startswith("L_skipL:"): inside = True
        if ln.startswith("L_adv:"): inside = False
        t = ln.strip()
        if inside:
            if kind == "mfma" and t.startswith("v_mfma"): continue
            if kind == "lds" and (t.startswith("ds_read") or t.startswith("s_waitcnt lgkm")): continue
            if kind == "valu" and t.startswith("v_") and not t.startswith("v_mfma"): continue
            if kind == "valu" and t.startswith("s_cbranch_vccnz"): continue
        res.append(ln)
    out = res
for k in ("mfma", "lds", "valu"):
    if "no" + k in ARGS: strip_loop(k)
for ln in out:
    m = re.search(r"buffer_.*offset:(\d+)", ln)
    if m: assert int(m.group(1)) < 4096, ln
open(sys.argv[1], "w").write("\n".join(out) + "\n")
```

```python
import math, sys, struct, re

out = []
def e(s=""):
    out.append(s)

ARGS = sys.argv[2:]
STAMP = "stamp" in ARGS
NT = "" if "nont" in ARGS else " nt"

HEADER = """; Kernarg layout for this problem (64 bytes, ptrs only, base s[0:1]):
; @launch kernel=attn_kernel grid=(256,1,1) block=(448,1,1) lds=163840
; @launch kernel=oproj_kernel grid=(256,1,1) block=(576,1,1) lds=131072
; @launch kernel=reduce_kernel grid=(256,1,1) block=(576,1,1) lds=0
.amdgcn_target "amdgcn-amd-amdhsa--gfx950"
.text
"""

def f2u(f):
    return struct.unpack("<I", struct.pack("<f", f))[0]

CSCALE = (128 ** -0.5) * math.log2(math.e)
PART_OFF = 16777216
STAMP_OFF = 67108864
SV = 252

def stamp():
    if not STAMP: return
    e("  s_memtime s[52:53]")
    e("  s_waitcnt lgkmcnt(0)")
    e(f"  v_mov_b32 v{SV+1}, s52")
    e(f"  v_cmp_eq_u32 s[54:55], s50, v{SV+2}")
    e("  s_nop 1")
    e(f"  v_cndmask_b32 v{SV}, v{SV}, v{SV+1}, s[54:55]")
    e("  s_add_u32 s50, s50, 1")

def stamp_out():
    if not STAMP: return
    e("  s_mul_i32 s3, s2, 9")
    e("  s_add_u32 s3, s3, s36")
    e("  s_lshl_b32 s3, s3, 8")
    e(f"  s_add_u32 s3, s3, {STAMP_OFF}")
    e("  s_add_u32 s56, s12, s3")
    e("  s_addc_u32 s57, s13, 0")
    e("  s_mov_b32 s58, 256")
    e("  s_mov_b32 s59, 0x00020000")
    e(f"  v_lshlrev_b32 v{SV+1}, 2, v{SV+2}")
    e(f"  buffer_store_dword v{SV}, v{SV+1}, s[56:59], 0 offen")

def lane_setup():
    e("  v_lshrrev_b32 v1, 6, v0")
    e("  v_and_b32 v0, 63, v0")
    e("  s_nop 0")
    e("  v_readfirstlane_b32 s36, v1")
    e("  v_and_b32 v1, 15, v0")
    e("  v_lshrrev_b32 v2, 4, v0")

def tr_addr_setup(mode="x"):
    e("  v_bfe_u32 v24, v0, 2, 2")
    e("  v_and_b32 v25, 3, v0")
    e("  v_and_b32 v26, 1, v2")
    if mode == "x":
        e("  v_lshl_add_u32 v27, v2, 4, v24")
    else:
        e("  v_lshl_add_u32 v27, v26, 4, v24")
        e("  v_lshrrev_b32 v3, 1, v2")
        e("  v_lshl_add_u32 v27, v3, 3, v27")
    e("  v_lshl_add_u32 v26, v26, 2, v24")
    e("  v_lshlrev_b32 v27, 8, v27")
    e("  v_lshrrev_b32 v3, 1, v25")
    e("  v_lshl_add_u32 v27, v3, 4, v27")
    e("  v_and_b32 v3, 1, v25")
    e("  v_lshl_add_u32 v27, v3, 3, v27")
    for j in range(8):
        e(f"  v_xor_b32 v3, {j}, v26")
        e(f"  v_lshl_add_u32 v{14+j}, v3, 5, v27")

MFMA = "v_mfma_f32_16x16x32_bf16"

Qr = [28, 44]
Or = [60, 92]
Sr = [124, 140]
ONES = 156
Lr = [160, 164]
F = 168
Mr = [22, 23]
Tm = [(24, 25), (6, 7)]
def xreg(T, tile, ks):
    pool = list(range(28, 60, 4)) + list(range(124, 168, 4)) + list(range(200, 252, 4))
    return pool[tile * 16 + ks]

def gemm_pair(T, p, accs, xr_fn, WF, hbrows=8):
    def reads(kidx, j):
        tile, hb = kidx >> 1, kidx & 1
        for hh in range(2):
            off = tile * 16384 + (hbrows * hb + 4 * hh) * 256
            r = WF + 4 * j + 2 * hh
            e(f"  ds_read_b64_tr_b16 v[{r}:{r+1}], v{14+j} offset:{off}")
    for j in range(8):
        reads(0, j)
    for kidx in range(4):
        for j in range(8):
            e(f"  s_waitcnt lgkmcnt({14 if kidx < 3 else 14-2*j})")
            a = WF + 4 * j
            for tl in range(T):
                xr = xr_fn(tl, 4 * p + kidx)
                d = accs[tl] + 4 * j
                e(f"  {MFMA} v[{d}:{d+3}], v[{a}:{a+3}], v[{xr}:{xr+3}], v[{d}:{d+3}]")
            if kidx < 3:
                reads(kidx + 1, j)

def softmax_ops(tl, lab):
    S = [Sr[tl] + i for i in range(16)]
    a, b = Tm[tl]
    m = Mr[tl]
    L = []
    L.append(f"  v_max3_f32 v{a}, v{S[0]}, v{S[1]}, v{S[2]}")
    L.append(f"  v_max3_f32 v{b}, v{S[3]}, v{S[4]}, v{S[5]}")
    L.append(f"  v_max3_f32 v{a}, v{a}, v{S[6]}, v{S[7]}")
    L.append(f"  v_max3_f32 v{b}, v{b}, v{S[8]}, v{S[9]}")
    L.append(f"  v_max3_f32 v{a}, v{a}, v{S[10]}, v{S[11]}")
    L.append(f"  v_max3_f32 v{b}, v{b}, v{S[12]}, v{S[13]}")
    L.append(f"  v_max3_f32 v{a}, v{a}, v{S[14]}, v{S[15]}")
    L.append(f"  v_max_f32 v{a}, v{a}, v{b}")
    L.append(f"  v_fma_f32 v{b}, v{a}, s44, -v{m}")
    L.append(f"  v_cmp_lt_f32 vcc, 0x41000000, v{b}\n  s_cbranch_vccnz L_slow{lab}\nL_back{lab}:")
    for i in range(16):
        L.append(f"  v_fma_f32 v{S[i]}, v{S[i]}, s44, -v{m}")
    for i in range(16):
        L.append(f"  v_exp_f32 v{S[i]}, v{S[i]}")
    L.append("  s_nop 0")
    for i in range(8):
        L.append(f"  v_cvt_pk_bf16_f32 v{S[i]}, v{S[2*i]}, v{S[2*i+1]}")
    return L

def slow_path(tl, lab):
    a, b = Tm[tl]
    m = Mr[tl]
    e(f"L_slow{lab}:")
    e(f"  v_mov_b32 v{b}, v{a}")
    e(f"  s_nop 1")
    e(f"  v_permlane32_swap_b32 v{a}, v{b}")
    e(f"  v_max_f32 v{a}, v{a}, v{b}")
    e(f"  v_mov_b32 v{b}, v{a}")
    e(f"  s_nop 1")
    e(f"  v_permlane16_swap_b32 v{a}, v{b}")
    e(f"  v_max_f32 v{a}, v{a}, v{b}")
    e(f"  v_mul_f32 v{a}, s44, v{a}")
    e(f"  v_max_f32 v{a}, v{a}, v{m}")
    e(f"  v_sub_f32 v{b}, v{m}, v{a}")
    e(f"  v_exp_f32 v{b}, v{b}")
    e(f"  v_mov_b32 v{m}, v{a}")
    for r in list(range(Or[tl], Or[tl] + 32)) + list(range(Lr[tl], Lr[tl] + 4)):
        e(f"  v_mul_f32 v{r}, v{r}, v{b}")
    e(f"  s_branch L_back{lab}")

def interleave(main, fill, start=0, per=4):
    fi = 0
    for gi, g in enumerate(main):
        for s_ in g: e(s_)
        if gi >= start:
            for _ in range(per):
                if fi < len(fill):
                    e(fill[fi]); fi += 1
    while fi < len(fill):
        e(fill[fi]); fi += 1

def compute_path(T):
    P = f"c{T}"
    e("  s_lshl_b32 s3, s36, 5")
    e("  v_add_u32 v25, s3, v1")
    e("  v_lshlrev_b32 v25, 10, v25")
    e("  v_lshl_add_u32 v4, v2, 5, v25")
    if T == 2:
        e("  v_add_u32 v5, 16384, v4")
    def xloads(c):
        for tl in range(T):
            for ks in range(4 * c, 4 * c + 4):
                r = xreg(T, tl, ks)
                e(f"  buffer_load_dwordx4 v[{r}:{r+3}], v{4+tl}, s[28:31], 0 offen offset:{128*(ks>>1) + 16*(ks&1)}")
    xloads(0)
    xloads(1)
    tr_addr_setup("x")
    for tl in range(T):
        for r in range(Or[tl], Or[tl] + 32):
            e(f"  v_mov_b32 v{r}, 0")
    wphys = [4, 2, 3, 4]
    prev = 0
    for p in range(4):
        stamp()
        e("  s_barrier")
        stamp()
        if p + 2 < 4:
            xloads(p + 2)
        delta = wphys[p] * 32768 - prev
        prev = wphys[p] * 32768
        e(f"  s_mov_b32 s3, {delta & 0xffffffff}")
        for j in range(8):
            e(f"  v_add_u32 v{14+j}, s3, v{14+j}")
        e(f"  s_waitcnt vmcnt({4*T*(min(3, p+2) - p)})")
        gemm_pair(T, p, Or, lambda tl, ks: xreg(T, tl, ks), F)
    e(f"  v_mul_u32_u24 v3, {12*256}, v2")
    e(f"  v_add_u32 v3, {prev}, v3")
    for j in range(8):
        e(f"  v_sub_u32 v{14+j}, v{14+j}, v3")
    e("  v_and_b32 v26, 1, v2")
    e("  v_lshrrev_b32 v27, 1, v2")
    e("  v_lshl_add_u32 v26, v26, 1, v27")
    e("  v_xor_b32 v26, v26, v1")
    for s in range(4):
        e(f"  v_xor_b32 v3, {4*s}, v26")
        e(f"  v_lshlrev_b32 v3, 4, v3")
        e(f"  v_lshl_add_u32 v{10+s}, v1, 8, v3")
    e("  s_barrier")
    for t in range(4):
        for s in range(4):
            r = F + 4 * (4 * t + s)
            e(f"  ds_read_b128 v[{r}:{r+3}], v{10+s} offset:{t*4096}")
    for tl in range(T):
        for j in range(8):
            a = Or[tl] + 4 * j
            e(f"  v_cvt_pk_bf16_f32 v{Qr[tl]+2*j}, v{a}, v{a+1}")
            e(f"  v_cvt_pk_bf16_f32 v{Qr[tl]+1+2*j}, v{a+2}, v{a+3}")
    for tl in range(T):
        for r in range(Or[tl], Or[tl] + 32):
            e(f"  v_mov_b32 v{r}, 0")
    for tl in range(T):
        for s in range(4):
            e(f"  v_permlane16_swap_b32 v{Qr[tl]+4*s}, v{Qr[tl]+2+4*s}")
            e(f"  v_permlane16_swap_b32 v{Qr[tl]+1+4*s}, v{Qr[tl]+3+4*s}")
    for r in range(ONES, ONES + 4):
        e(f"  v_mov_b32 v{r}, 0x3f803f80")
    for tl in range(T):
        for r in range(Lr[tl], Lr[tl] + 4):
            e(f"  v_mov_b32 v{r}, 0")
        e(f"  v_mov_b32 v{Mr[tl]}, 0xff800000")
    e("  s_mov_b32 s40, 0")
    e("  s_mov_b32 s41, 0")
    e(f"L_loop{P}:")
    stamp()
    def qk(tl, idx):
        t, s = idx >> 2, idx & 3
        r = F + 4 * idx
        d = Sr[tl] + 4 * t
        q = Qr[tl] + 4 * s
        c = "0" if s == 0 else f"v[{d}:{d+3}]"
        return f"  {MFMA} v[{d}:{d+3}], v[{r}:{r+3}], v[{q}:{q+3}], {c}"
    def vreads(idx):
        r = F + 4 * idx
        u, j = idx >> 3, idx & 7
        return [f"  ds_read_b64_tr_b16 v[{r+2*hh}:{r+2*hh+1}], v{14+j} offset:{16384 + u*8192 + hh*4096}" for hh in range(2)]
    def pv(tl, idx):
        u, j = idx >> 3, idx & 7
        a = F + 4 * idx
        d = Or[tl] + 4 * j
        p = Sr[tl] + 4 * u
        return f"  {MFMA} v[{d}:{d+3}], v[{a}:{a+3}], v[{p}:{p+3}], v[{d}:{d+3}]"
    def lacc(tl, u):
        p = Sr[tl] + 4 * u
        l = Lr[tl]
        return f"  {MFMA} v[{l}:{l+3}], v[{ONES}:{ONES+3}], v[{p}:{p+3}], v[{l}:{l+3}]"
    def kread(idx):
        t, s = idx >> 2, idx & 3
        a = F + 4 * idx
        return f"  ds_read_b128 v[{a}:{a+3}], v{10+s} offset:{t*4096}"
    adv = ["  s_add_u32 s42, s41, 32768", "  s_cmp_ge_u32 s42, 163840", "  s_cselect_b32 s42, 0, s42", "  s_sub_u32 s3, s42, s41"]
    kadv = [f"  v_add_u32 v{r}, s3, v{r}" for r in range(10, 14)]
    vadv = [f"  v_add_u32 v{r}, s3, v{r}" for r in range(14, 22)]
    if T == 2:
        for s_ in adv: e(s_)
        for idx in range(16):
            e(f"  s_waitcnt lgkmcnt({15-idx})")
            e(qk(0, idx))
        main = [[qk(1, idx)] + vreads(idx) for idx in range(16)]
        interleave(main, kadv + softmax_ops(0, P + "a"), start=1, per=4)
        e("  s_nop 1")
        main = []
        for idx in range(16):
            g = []
            if idx % 8 == 0: g.append(lacc(0, idx >> 3))
            g.append(f"  s_waitcnt lgkmcnt({min(15, 30-2*idx)})")
            g.append(pv(0, idx))
            main.append(g)
        interleave(main, vadv + softmax_ops(1, P + "b"), start=1, per=4)
        stamp()
        e("  s_barrier")
        stamp()
        for idx in range(16):
            if idx % 8 == 0: e(lacc(1, idx >> 3))
            e(pv(1, idx))
            e(kread(idx))
    else:
        for s_ in adv: e(s_)
        for idx in range(16):
            e(f"  s_waitcnt lgkmcnt(15)")
            e(qk(0, idx))
            for s_ in vreads(idx): e(s_)
        for s_ in kadv: e(s_)
        e("  s_nop 3")
        for s_ in softmax_ops(0, P + "a"): e(s_)
        for s_ in vadv: e(s_)
        stamp()
        e("  s_waitcnt lgkmcnt(0)")
        e("  s_barrier")
        stamp()
        for idx in range(16):
            if idx % 8 == 0: e(lacc(0, idx >> 3))
            e(pv(0, idx))
            e(kread(idx))
    e("  s_mov_b32 s41, s42")
    e("  s_add_u32 s40, s40, 1")
    e("  s_cmp_lt_u32 s40, 16")
    e(f"  s_cbranch_scc1 L_loop{P}")
    e("  s_mul_i32 s40, s37, 9")
    e("  s_lshl_b32 s39, s36, 1")
    e("  s_add_u32 s40, s40, s39")
    e("  s_lshl_b32 s40, s40, 7")
    e("  s_lshl_b32 s39, s38, 2")
    e("  s_add_u32 s40, s40, s39")
    e("  s_lshl_b32 s40, s40, 10")
    e("  s_add_u32 s32, s12, s40")
    e("  s_addc_u32 s33, s13, 0")
    e(f"  s_mov_b32 s34, {131072*(T-1) + 4096}")
    e("  s_mov_b32 s35, 0x00020000")
    e("  s_mov_b32 s39, 131072")
    e("  v_lshlrev_b32 v24, 4, v0")
    for tl in range(T):
        e(f"  v_rcp_f32 v{25+tl}, v{Lr[tl]}")
    e("  s_nop 0")
    for tl in range(T):
        for r in range(Or[tl], Or[tl] + 32):
            e(f"  v_mul_f32 v{r}, v{r}, v{25+tl}")
        for j in range(8):
            a = Or[tl] + 4 * j
            e(f"  v_cvt_pk_bf16_f32 v{Qr[tl]+2*j}, v{a}, v{a+1}")
            e(f"  v_cvt_pk_bf16_f32 v{Qr[tl]+1+2*j}, v{a+2}, v{a+3}")
        e("  s_nop 1")
        for s in range(4):
            e(f"  v_permlane16_swap_b32 v{Qr[tl]+4*s}, v{Qr[tl]+2+4*s}")
            e(f"  v_permlane16_swap_b32 v{Qr[tl]+1+4*s}, v{Qr[tl]+3+4*s}")
        so = "0" if tl == 0 else "s39"
        for s in range(4):
            e(f"  buffer_store_dwordx4 v[{Qr[tl]+4*s}:{Qr[tl]+3+4*s}], v24, s[32:35], {so} offen offset:{1024*s}")
    stamp()
    stamp_out()
    e("  s_endpgm")
    for tl in range(T):
        slow_path(tl, P + "ab"[tl])

def producer_path():
    e("  s_sub_u32 s45, s36, 5")
    e("  s_lshl_b32 s46, s45, 14")
    e("  s_cmp_eq_u32 s45, 0")
    e("  s_cselect_b32 s60, s16, s20")
    e("  s_cselect_b32 s61, s17, s21")
    e("  s_mov_b32 s62, 262144")
    e("  s_mov_b32 s63, 0x00020000")
    for n in range(4):
        e(f"  v_add_u32 v24, {4*n}, v2")
        e(f"  v_add_u32 v25, {4*(n&1)}, v2")
        e(f"  v_lshlrev_b32 v25, 1, v25")
        e(f"  v_cndmask_b32 v24, v25, v24, s[48:49]")
        e(f"  v_xor_b32 v24, v24, v1")
        e(f"  v_lshlrev_b32 v24, 4, v24")
        e(f"  v_lshl_add_u32 v{4+n}, v2, 8, v24")
    for b in range(2):
        e(f"  v_add_u32 v24, {4*b}, v2")
        e(f"  v_lshlrev_b32 v24, 1, v24")
        e(f"  v_xor_b32 v24, v24, v1")
        e(f"  v_lshlrev_b32 v24, 4, v24")
        e(f"  v_lshl_add_u32 v{8+b}, v2, 13, v24")
    e("  s_lshl_b32 s47, s45, 19")
    def issue_W(p, phys):
        e(f"  s_add_u32 s64, s46, {phys*32768}")
        e(f"  s_add_u32 s65, s47, {2*p*524288}")
        for n in range(16):
            e(f"  s_mov_b32 m0, s64")
            e(f"  s_add_u32 s64, s64, 1024")
            e(f"  buffer_load_dwordx4 v{8 + ((n>>2)&1)}, s[24:27], s65 offen lds")
            if n < 15:
                e(f"  s_add_u32 s65, s65, 32768")
    def issue_KV(slot, soff):
        e(f"  s_add_u32 s64, s46, {slot}")
        e(f"  s_mov_b32 s65, {soff}")
        for q in range(4):
            e(f"  s_mov_b32 m0, s64")
            e(f"  s_add_u32 s64, s64, 4096")
            for n in range(4):
                e(f"  buffer_load_dwordx4 v{4+n}, s[60:63], s65 offen offset:{1024*n}{NT} lds")
            if q < 3:
                e(f"  s_add_u32 s65, s65, 4096")
    issue_W(0, 4)
    issue_W(1, 2)
    stamp()
    e("  s_waitcnt vmcnt(16)")
    e("  s_barrier")
    stamp()
    issue_KV(0, 0)
    issue_W(2, 3)
    stamp()
    e("  s_waitcnt vmcnt(32)")
    e("  s_barrier")
    stamp()
    issue_W(3, 4)
    issue_KV(32768, 16384)
    stamp()
    e("  s_waitcnt vmcnt(32)")
    e("  s_barrier")
    stamp()
    issue_KV(2*32768, 2*16384)
    stamp()
    e("  s_waitcnt vmcnt(32)")
    e("  s_barrier")
    stamp()
    issue_KV(3*32768, 3*16384)
    e("  s_barrier")
    issue_KV(4*32768, 4*16384)
    e("  s_mov_b32 s40, 0")
    e("  s_mov_b32 s41, 0")
    e(f"  s_mov_b32 s43, {5*16384}")
    e("L_loopP:")
    stamp()
    e("  s_waitcnt vmcnt(48)")
    stamp()
    e("  s_barrier")
    stamp()
    issue_KV("s41", "s43")
    e("  s_add_u32 s41, s41, 32768")
    e("  s_cmp_ge_u32 s41, 163840")
    e("  s_cselect_b32 s41, 0, s41")
    e("  s_add_u32 s43, s43, 16384")
    e("  s_add_u32 s40, s40, 1")
    e("  s_cmp_lt_u32 s40, 16")
    e("  s_cbranch_scc1 L_loopP")
    stamp()
    stamp_out()
    e("  s_endpgm")

def gen_attn():
    e(".globl attn_kernel")
    e(".p2align 8")
    e(".type attn_kernel,@function")
    e("attn_kernel:")
    e("  s_cmp_ge_u32 s2, 256")
    e("  s_cbranch_scc1 L_attn_done")
    e("  s_load_dwordx8 s[4:11], s[0:1], 0")
    e("  s_load_dwordx2 s[12:13], s[0:1], 56")
    if STAMP:
        e("  s_mov_b32 s50, 0")
        e(f"  v_mov_b32 v{SV}, 0")
        e(f"  v_and_b32 v{SV+2}, 63, v0")
        stamp()
    lane_setup()
    e("  s_and_b32 s3, s2, 7")
    e("  s_lshr_b32 s37, s2, 3")
    e("  s_and_b32 s38, s37, 3")
    e("  s_lshl_b32 s3, s3, 2")
    e("  s_add_u32 s38, s38, s3")
    e("  s_lshr_b32 s37, s37, 2")
    e(f"  s_mov_b32 s44, 0x{f2u(CSCALE):08x}")
    e("  s_cmp_eq_u32 s36, 5")
    e("  s_cselect_b64 s[48:49], -1, 0")
    e("  s_waitcnt lgkmcnt(0)")
    e("  s_cmp_ge_u32 s36, 5")
    e("  s_cbranch_scc1 L_prod")
    e("  s_mul_i32 s40, s37, 147456")
    e("  s_add_u32 s28, s4, s40")
    e("  s_addc_u32 s29, s5, 0")
    e("  s_mov_b32 s30, 147456")
    e("  s_mov_b32 s31, 0x00020000")
    e("  s_cmp_eq_u32 s36, 4")
    e("  s_cbranch_scc1 L_c1")
    compute_path(2)
    e("L_c1:")
    compute_path(1)
    e("L_prod:")
    e("  s_lshl_b32 s39, s38, 8")
    e("  s_add_u32 s24, s10, s39")
    e("  s_addc_u32 s25, s11, 0")
    e("  s_sub_u32 s26, 4194304, s39")
    e("  s_mov_b32 s27, 0x00020000")
    e("  s_lshl_b32 s3, s37, 5")
    e("  s_add_u32 s3, s3, s38")
    e("  s_lshl_b32 s39, s3, 18")
    e("  s_lshr_b32 s40, s3, 14")
    e("  s_add_u32 s16, s6, s39")
    e("  s_addc_u32 s17, s7, s40")
    e("  s_add_u32 s20, s8, s39")
    e("  s_addc_u32 s21, s9, s40")
    producer_path()
    e("L_attn_done:")
    e("  s_endpgm")

def xreg2(ks):
    if ks < 4: return 28 + 4 * ks
    if ks < 10: return 76 + 4 * (ks - 4)
    return 140 + 4 * (ks - 10)

def dma_pair(slot, srdA, soffA, vA, srdB, soffB, vB, nt=""):
    e(f"  s_mov_b32 m0, {slot}")
    e(f"  s_add_u32 s46, {slot}, 1024")
    e(f"  buffer_load_dwordx4 v{vA}, {srdA}, {soffA} offen{nt} lds")
    e(f"  s_mov_b32 m0, s46")
    e(f"  s_add_u32 s46, {slot}, 16384")
    e(f"  buffer_load_dwordx4 v{vA+1}, {srdA}, {soffA} offen{nt} lds")
    e(f"  s_mov_b32 m0, s46")
    e(f"  s_add_u32 s46, {slot}, 17408")
    e(f"  buffer_load_dwordx4 v{vB}, {srdB}, {soffB} offen{nt} lds")
    e(f"  s_mov_b32 m0, s46")
    e(f"  s_nop 0")
    e(f"  buffer_load_dwordx4 v{vB+1}, {srdB}, {soffB} offen{nt} lds")

def w_dma_voffs(rowshift, vdst):
    for n, vr in ((0, "v3"), (1, "v24")):
        e(f"  v_and_b32 v25, 3, {vr}")
        e(f"  v_bfe_u32 v27, {vr}, 4, 1")
        e(f"  v_lshl_add_u32 v25, v27, 2, v25")
        e(f"  v_lshlrev_b32 v25, 1, v25")
        e(f"  v_xor_b32 v25, v25, v1")
        e(f"  v_lshlrev_b32 v25, 4, v25")
        e(f"  v_lshl_add_u32 v{vdst+n}, {vr}, {rowshift}, v25")

def gen_oproj():
    e(".globl oproj_kernel")
    e(".p2align 8")
    e(".type oproj_kernel,@function")
    e("oproj_kernel:")
    e("  s_cmp_ge_u32 s2, 256")
    e("  s_cbranch_scc1 L_op_done")
    e("  s_load_dwordx2 s[4:5], s[0:1], 32")
    e("  s_load_dwordx2 s[8:9], s[0:1], 56")
    lane_setup()
    e("  s_and_b32 s37, s2, 7")
    e("  s_lshr_b32 s38, s2, 3")
    e("  s_and_b32 s39, s38, 3")
    e("  s_lshr_b32 s40, s38, 2")
    e("  s_lshl_b32 s3, s36, 3")
    e("  v_add_u32 v3, s3, v2")
    e("  v_add_u32 v24, 4, v3")
    w_dma_voffs(10, 8)
    e("  v_lshlrev_b32 v23, 4, v0")
    e("  v_add_u32 v22, 4096, v23")
    e("  s_waitcnt lgkmcnt(0)")
    e("  s_mul_i32 s3, s40, 9")
    e("  s_add_u32 s3, s3, s36")
    e("  s_lshl_b32 s3, s3, 7")
    e("  s_lshl_b32 s41, s37, 4")
    e("  s_add_u32 s3, s3, s41")
    e("  s_lshl_b32 s3, s3, 10")
    e("  s_add_u32 s28, s8, s3")
    e("  s_addc_u32 s29, s9, 0")
    e("  s_mov_b32 s30, 16384")
    e("  s_mov_b32 s31, 0x00020000")
    e("  s_lshl_b32 s3, s37, 19")
    e("  s_lshl_b32 s41, s39, 8")
    e("  s_add_u32 s3, s3, s41")
    e("  s_add_u32 s24, s4, s3")
    e("  s_addc_u32 s25, s5, 0")
    e("  s_sub_u32 s26, 4194304, s3")
    e("  s_mov_b32 s27, 0x00020000")
    e("  s_lshl_b32 s45, s36, 11")
    e("  s_mov_b32 s50, 8192")
    uid = [0]
    def stage(p):
        uid[0] += 1
        for ks in range(4 * p, 4 * p + 4):
            r = xreg2(ks)
            so = "0" if ks < 8 else "s50"
            e(f"  buffer_load_dwordx4 v[{r}:{r+3}], v{23 - ((ks>>2)&1)}, s[28:31], {so} offen offset:{1024*(ks&3)}")
        e("  s_cmp_ge_u32 s36, 8")
        e(f"  s_cbranch_scc1 L_os{uid[0]}")
        e(f"  s_add_u32 s47, s45, {p*32768}")
        e(f"  s_mov_b32 s48, {(2*p)*65536}")
        e(f"  s_mov_b32 s49, {(2*p+1)*65536}")
        dma_pair("s47", "s[24:27]", "s48", 8, "s[24:27]", "s49", 8)
        e(f"L_os{uid[0]}:")
    stage(0)
    stage(1)
    e("  s_lshl_b32 s3, s37, 5")
    e("  s_add_u32 s3, s3, s38")
    e("  s_mul_i32 s3, s3, 9")
    e("  s_add_u32 s3, s3, s36")
    e("  s_lshl_b32 s3, s3, 13")
    e(f"  s_add_u32 s3, s3, {PART_OFF}")
    e("  s_add_u32 s32, s8, s3")
    e("  s_addc_u32 s33, s9, 0")
    e("  s_mov_b32 s34, 8192")
    e("  s_mov_b32 s35, 0x00020000")
    tr_addr_setup("o")
    for r in range(44, 76):
        e(f"  v_mov_b32 v{r}, 0")
    for p in range(4):
        n_after = 1 if p < 3 else 0
        e("  s_cmp_ge_u32 s36, 8")
        e(f"  s_cbranch_scc1 L_ow8_{p}")
        e(f"  s_waitcnt vmcnt({8*n_after})")
        e(f"  s_branch L_owj_{p}")
        e(f"L_ow8_{p}:")
        e(f"  s_waitcnt vmcnt({4*n_after})")
        e(f"L_owj_{p}:")
        e("  s_barrier")
        if p + 2 < 4:
            stage(p + 2)
        if p > 0:
            for j in range(8):
                e(f"  v_add_u32 v{14+j}, 0x8000, v{14+j}")
        gemm_pair(1, p, [44], lambda tl, ks: xreg2(ks), 100, 32)
    e("  s_nop 7")
    for j in range(8):
        a = 44 + 4 * j
        e(f"  buffer_store_dwordx4 v[{a}:{a+3}], v{23 - (j>>2)}, s[32:35], 0 offen offset:{1024*(j&3)}")
    e("L_op_done:")
    e("  s_endpgm")

def gen_reduce():
    e(".globl reduce_kernel")
    e(".p2align 8")
    e(".type reduce_kernel,@function")
    e("reduce_kernel:")
    e("  s_cmp_ge_u32 s2, 256")
    e("  s_cbranch_scc1 L_rd_done")
    e("  s_load_dwordx2 s[4:5], s[0:1], 40")
    e("  s_load_dwordx2 s[8:9], s[0:1], 56")
    lane_setup()
    e("  s_and_b32 s37, s2, 7")
    e("  s_lshr_b32 s38, s2, 3")
    e("  s_and_b32 s39, s38, 3")
    e("  s_lshr_b32 s40, s38, 2")
    e("  v_lshlrev_b32 v3, 4, v0")
    e("  s_waitcnt lgkmcnt(0)")
    e("  s_mul_i32 s3, s38, 9")
    e("  s_add_u32 s3, s3, s36")
    e("  s_lshl_b32 s3, s3, 3")
    e("  s_add_u32 s3, s3, s37")
    e("  s_lshl_b32 s3, s3, 10")
    e(f"  s_add_u32 s3, s3, {PART_OFF}")
    e("  s_add_u32 s12, s8, s3")
    e("  s_addc_u32 s13, s9, 0")
    e(f"  s_mov_b32 s14, {7*2359296 + 1024}")
    e("  s_mov_b32 s15, 0x00020000")
    for ks in range(8):
        e(f"  s_mov_b32 s{20+ks}, {ks*2359296}")
    for ks in range(8):
        e(f"  buffer_load_dwordx4 v[{8+4*ks}:{11+4*ks}], v3, s[12:15], s{20+ks} offen")
    e("  s_mul_i32 s3, s40, 144")
    e("  s_lshl_b32 s41, s36, 4")
    e("  s_add_u32 s3, s3, s41")
    e("  s_lshl_b32 s3, s3, 10")
    e("  s_lshl_b32 s41, s39, 8")
    e("  s_add_u32 s3, s3, s41")
    e("  s_lshl_b32 s41, s37, 5")
    e("  s_add_u32 s3, s3, s41")
    e("  s_add_u32 s16, s4, s3")
    e("  s_addc_u32 s17, s5, 0")
    e("  s_sub_u32 s18, 1179648, s3")
    e("  s_mov_b32 s19, 0x00020000")
    e("  v_lshlrev_b32 v4, 10, v1")
    e("  v_lshl_add_u32 v4, v2, 3, v4")
    for ks in range(1, 8):
        e(f"  s_waitcnt vmcnt({7-ks})")
        for r in range(4):
            e(f"  v_add_f32 v{8+r}, v{8+r}, v{8+4*ks+r}")
    e("  v_cvt_pk_bf16_f32 v8, v8, v9")
    e("  v_cvt_pk_bf16_f32 v9, v10, v11")
    e("  buffer_store_dwordx2 v[8:9], v4, s[16:19], 0 offen")
    e("L_rd_done:")
    e("  s_endpgm")

def desc(name, vgpr, sgpr=72):
    e(f".amdhsa_kernel {name}")
    e(f"  .amdhsa_next_free_vgpr {vgpr}")
    e(f"  .amdhsa_next_free_sgpr {sgpr}")
    e(f"  .amdhsa_accum_offset {(vgpr+3)//4*4}")
    e("  .amdhsa_group_segment_fixed_size 0")
    e("  .amdhsa_kernarg_size 64")
    e("  .amdhsa_user_sgpr_count 2")
    e("  .amdhsa_user_sgpr_kernarg_segment_ptr 1")
    e("  .amdhsa_system_sgpr_workgroup_id_x 1")
    e(".end_amdhsa_kernel")

out.append(HEADER)
gen_attn()
gen_oproj()
gen_reduce()
e('.section .rodata,"a"')
e(".p2align 6")
desc("attn_kernel", 256)
e(".p2align 6")
desc("oproj_kernel", 164)
e(".p2align 6")
desc("reduce_kernel", 40)
txt = "\n".join(out) + "\n"
for ln in txt.split("\n"):
    m = re.search(r"buffer_.*offset:(\d+)", ln)
    if m: assert int(m.group(1)) < 4096, ln
open(sys.argv[1], "w").write(txt)
```

```python
import math, sys, struct, re

out = []
def e(s=""):
    out.append(s)

ARGS = sys.argv[2:]
STAMP = "stamp" in ARGS
NT = "" if "nont" in ARGS else " nt"

HEADER = """; Kernarg layout for this problem (64 bytes, ptrs only, base s[0:1]):
; @launch kernel=attn_kernel grid=(256,1,1) block=(448,1,1) lds=163840
.amdgcn_target "amdgcn-amd-amdhsa--gfx950"
.text
"""

def f2u(f):
    return struct.unpack("<I", struct.pack("<f", f))[0]

CSCALE = (128 ** -0.5) * math.log2(math.e)
PART_OFF = 16777216
STAMP_OFF = 67108864
SV = 252

def stamp():
    if not STAMP: return
    e("  s_memtime s[52:53]")
    e("  s_waitcnt lgkmcnt(0)")
    e(f"  v_mov_b32 v{SV+1}, s52")
    e(f"  v_cmp_eq_u32 s[54:55], s50, v{SV+2}")
    e("  s_nop 1")
    e(f"  v_cndmask_b32 v{SV}, v{SV}, v{SV+1}, s[54:55]")
    e("  s_add_u32 s50, s50, 1")

def stamp_out():
    if not STAMP: return
    e("  s_mul_i32 s3, s2, 9")
    e("  s_add_u32 s3, s3, s36")
    e("  s_lshl_b32 s3, s3, 8")
    e(f"  s_add_u32 s3, s3, {STAMP_OFF}")
    e("  s_add_u32 s56, s12, s3")
    e("  s_addc_u32 s57, s13, 0")
    e("  s_mov_b32 s58, 256")
    e("  s_mov_b32 s59, 0x00020000")
    e(f"  v_lshlrev_b32 v{SV+1}, 2, v{SV+2}")
    e(f"  buffer_store_dword v{SV}, v{SV+1}, s[56:59], 0 offen")

def lane_setup():
    e("  v_lshrrev_b32 v1, 6, v0")
    e("  v_and_b32 v0, 63, v0")
    e("  s_nop 0")
    e("  v_readfirstlane_b32 s36, v1")
    e("  v_and_b32 v1, 15, v0")
    e("  v_lshrrev_b32 v2, 4, v0")

def tr_addr_setup(mode="x"):
    e("  v_bfe_u32 v24, v0, 2, 2")
    e("  v_and_b32 v25, 3, v0")
    e("  v_and_b32 v26, 1, v2")
    if mode == "x":
        e("  v_lshl_add_u32 v27, v2, 4, v24")
    else:
        e("  v_lshl_add_u32 v27, v26, 4, v24")
        e("  v_lshrrev_b32 v3, 1, v2")
        e("  v_lshl_add_u32 v27, v3, 3, v27")
    e("  v_lshl_add_u32 v26, v26, 2, v24")
    e("  v_lshlrev_b32 v27, 8, v27")
    e("  v_lshrrev_b32 v3, 1, v25")
    e("  v_lshl_add_u32 v27, v3, 4, v27")
    e("  v_and_b32 v3, 1, v25")
    e("  v_lshl_add_u32 v27, v3, 3, v27")
    for j in range(8):
        e(f"  v_xor_b32 v3, {j}, v26")
        e(f"  v_lshl_add_u32 v{14+j}, v3, 5, v27")

MFMA = "v_mfma_f32_16x16x32_bf16"

Qr = [28, 44]
Or = [60, 92]
Sr = [124, 140]
ONES = 156
Lr = [160, 164]
F = 168
Mr = [22, 23]
Tm = [(24, 25), (6, 7)]
def xreg(T, tile, ks):
    pool = list(range(28, 60, 4)) + list(range(124, 168, 4)) + list(range(200, 252, 4))
    return pool[tile * 16 + ks]

def gemm_pair(T, p, accs, xr_fn, WF, hbrows=8):
    def reads(kidx, j):
        tile, hb = kidx >> 1, kidx & 1
        for hh in range(2):
            off = tile * 16384 + (hbrows * hb + 4 * hh) * 256
            r = WF + 4 * j + 2 * hh
            e(f"  ds_read_b64_tr_b16 v[{r}:{r+1}], v{14+j} offset:{off}")
    for j in range(8):
        reads(0, j)
    for kidx in range(4):
        for j in range(8):
            if j % 2 == 0:
                e(f"  s_waitcnt lgkmcnt({12 if kidx < 3 else 12-2*j})")
            a = WF + 4 * j
            for tl in range(T):
                xr = xr_fn(tl, 4 * p + kidx)
                d = accs[tl] + 4 * j
                e(f"  {MFMA} v[{d}:{d+3}], v[{a}:{a+3}], v[{xr}:{xr+3}], v[{d}:{d+3}]")
            if kidx < 3:
                reads(kidx + 1, j)

def softmax_ops(tl, lab):
    S = [Sr[tl] + i for i in range(16)]
    a, b = Tm[tl]
    m = Mr[tl]
    L = []
    L.append(f"  v_max3_f32 v{a}, v{S[0]}, v{S[1]}, v{S[2]}")
    L.append(f"  v_max3_f32 v{b}, v{S[3]}, v{S[4]}, v{S[5]}")
    L.append(f"  v_max3_f32 v{a}, v{a}, v{S[6]}, v{S[7]}")
    L.append(f"  v_max3_f32 v{b}, v{b}, v{S[8]}, v{S[9]}")
    L.append(f"  v_max3_f32 v{a}, v{a}, v{S[10]}, v{S[11]}")
    L.append(f"  v_max3_f32 v{b}, v{b}, v{S[12]}, v{S[13]}")
    L.append(f"  v_max3_f32 v{a}, v{a}, v{S[14]}, v{S[15]}")
    L.append(f"  v_max_f32 v{a}, v{a}, v{b}")
    L.append(f"  v_fma_f32 v{b}, v{a}, s44, -v{m}")
    L.append(f"  v_cmp_lt_f32 vcc, 0x41000000, v{b}\n  s_cbranch_vccnz L_slow{lab}\nL_back{lab}:")
    for i in range(16):
        L.append(f"  v_fma_f32 v{S[i]}, v{S[i]}, s44, -v{m}")
    for i in range(16):
        L.append(f"  v_exp_f32 v{S[i]}, v{S[i]}")
    L.append("  s_nop 0")
    for i in range(8):
        L.append(f"  v_cvt_pk_bf16_f32 v{S[i]}, v{S[2*i]}, v{S[2*i+1]}")
    return L

def slow_path(tl, lab):
    a, b = Tm[tl]
    m = Mr[tl]
    e(f"L_slow{lab}:")
    e(f"  v_mov_b32 v{b}, v{a}")
    e(f"  s_nop 1")
    e(f"  v_permlane32_swap_b32 v{a}, v{b}")
    e(f"  v_max_f32 v{a}, v{a}, v{b}")
    e(f"  v_mov_b32 v{b}, v{a}")
    e(f"  s_nop 1")
    e(f"  v_permlane16_swap_b32 v{a}, v{b}")
    e(f"  v_max_f32 v{a}, v{a}, v{b}")
    e(f"  v_mul_f32 v{a}, s44, v{a}")
    e(f"  v_max_f32 v{a}, v{a}, v{m}")
    e(f"  v_sub_f32 v{b}, v{m}, v{a}")
    e(f"  v_exp_f32 v{b}, v{b}")
    e(f"  v_mov_b32 v{m}, v{a}")
    for r in list(range(Or[tl], Or[tl] + 32)) + list(range(Lr[tl], Lr[tl] + 4)):
        e(f"  v_mul_f32 v{r}, v{r}, v{b}")
    e(f"  s_branch L_back{lab}")

def interleave(main, fill, start=0, per=4):
    fi = 0
    for gi, g in enumerate(main):
        for s_ in g: e(s_)
        if gi >= start:
            for _ in range(per):
                if fi < len(fill):
                    e(fill[fi]); fi += 1
    while fi < len(fill):
        e(fill[fi]); fi += 1

def compute_path(T):
    P = f"c{T}"
    e("  s_lshl_b32 s3, s36, 5")
    e("  v_add_u32 v25, s3, v1")
    e("  v_lshlrev_b32 v25, 10, v25")
    e("  v_lshl_add_u32 v4, v2, 5, v25")
    if T == 2:
        e("  v_add_u32 v5, 16384, v4")
    def xloads(c):
        for tl in range(T):
            for ks in range(4 * c, 4 * c + 4):
                r = xreg(T, tl, ks)
                e(f"  buffer_load_dwordx4 v[{r}:{r+3}], v{4+tl}, s[28:31], 0 offen offset:{128*(ks>>1) + 16*(ks&1)}")
    xloads(0)
    tr_addr_setup("x")
    for tl in range(T):
        for r in range(Or[tl], Or[tl] + 32):
            e(f"  v_mov_b32 v{r}, 0")
    wphys = [4, 2, 3, 4]
    prev = 0
    for p in range(4):
        stamp()
        e("  s_barrier")
        stamp()
        if p + 1 < 4:
            xloads(p + 1)
        delta = wphys[p] * 32768 - prev
        prev = wphys[p] * 32768
        e(f"  s_mov_b32 s3, {delta & 0xffffffff}")
        for j in range(8):
            e(f"  v_add_u32 v{14+j}, s3, v{14+j}")
        e(f"  s_waitcnt vmcnt({4*T*(min(3, p+1) - p)})")
        gemm_pair(T, p, Or, lambda tl, ks: xreg(T, tl, ks), F)
    e(f"  v_mul_u32_u24 v3, {12*256}, v2")
    e(f"  v_add_u32 v3, {prev}, v3")
    for j in range(8):
        e(f"  v_sub_u32 v{14+j}, v{14+j}, v3")
    e("  v_and_b32 v26, 1, v2")
    e("  v_lshrrev_b32 v27, 1, v2")
    e("  v_lshl_add_u32 v26, v26, 1, v27")
    e("  v_xor_b32 v26, v26, v1")
    for s in range(4):
        e(f"  v_xor_b32 v3, {4*s}, v26")
        e(f"  v_lshlrev_b32 v3, 4, v3")
        e(f"  v_lshl_add_u32 v{10+s}, v1, 8, v3")
    e("  s_barrier")
    for t in range(4):
        for s in range(4):
            r = F + 4 * (4 * t + s)
            e(f"  ds_read_b128 v[{r}:{r+3}], v{10+s} offset:{t*4096}")
    for tl in range(T):
        for j in range(8):
            a = Or[tl] + 4 * j
            e(f"  v_cvt_pk_bf16_f32 v{Qr[tl]+2*j}, v{a}, v{a+1}")
            e(f"  v_cvt_pk_bf16_f32 v{Qr[tl]+1+2*j}, v{a+2}, v{a+3}")
    for tl in range(T):
        for r in range(Or[tl], Or[tl] + 32):
            e(f"  v_mov_b32 v{r}, 0")
    for tl in range(T):
        for s in range(4):
            e(f"  v_permlane16_swap_b32 v{Qr[tl]+4*s}, v{Qr[tl]+2+4*s}")
            e(f"  v_permlane16_swap_b32 v{Qr[tl]+1+4*s}, v{Qr[tl]+3+4*s}")
    for r in range(ONES, ONES + 4):
        e(f"  v_mov_b32 v{r}, 0x3f803f80")
    for tl in range(T):
        for r in range(Lr[tl], Lr[tl] + 4):
            e(f"  v_mov_b32 v{r}, 0")
        e(f"  v_mov_b32 v{Mr[tl]}, 0xff800000")
    e("  s_mov_b32 s40, 0")
    e("  s_mov_b32 s41, 0")
    e(f"L_loop{P}:")
    stamp()
    def qk(tl, idx):
        t, s = idx >> 2, idx & 3
        r = F + 4 * idx
        d = Sr[tl] + 4 * t
        q = Qr[tl] + 4 * s
        c = "0" if s == 0 else f"v[{d}:{d+3}]"
        return f"  {MFMA} v[{d}:{d+3}], v[{r}:{r+3}], v[{q}:{q+3}], {c}"
    def vreads(idx):
        r = F + 4 * idx
        u, j = idx >> 3, idx & 7
        return [f"  ds_read_b64_tr_b16 v[{r+2*hh}:{r+2*hh+1}], v{14+j} offset:{16384 + u*8192 + hh*4096}" for hh in range(2)]
    def pv(tl, idx):
        u, j = idx >> 3, idx & 7
        a = F + 4 * idx
        d = Or[tl] + 4 * j
        p = Sr[tl] + 4 * u
        return f"  {MFMA} v[{d}:{d+3}], v[{a}:{a+3}], v[{p}:{p+3}], v[{d}:{d+3}]"
    def lacc(tl, u):
        p = Sr[tl] + 4 * u
        l = Lr[tl]
        return f"  {MFMA} v[{l}:{l+3}], v[{ONES}:{ONES+3}], v[{p}:{p+3}], v[{l}:{l+3}]"
    def kread(idx):
        t, s = idx >> 2, idx & 3
        a = F + 4 * idx
        return f"  ds_read_b128 v[{a}:{a+3}], v{10+s} offset:{t*4096}"
    adv = ["  s_add_u32 s42, s41, 32768", "  s_cmp_ge_u32 s42, 163840", "  s_cselect_b32 s42, 0, s42", "  s_sub_u32 s3, s42, s41"]
    kadv = [f"  v_add_u32 v{r}, s3, v{r}" for r in range(10, 14)]
    vadv = [f"  v_add_u32 v{r}, s3, v{r}" for r in range(14, 22)]
    if T == 2:
        for s_ in adv: e(s_)
        for idx in range(16):
            if idx % 4 == 0: e(f"  s_waitcnt lgkmcnt({12-idx})")
            e(qk(0, idx))
        main = [[qk(1, idx)] + vreads(idx) for idx in range(16)]
        interleave(main, kadv + softmax_ops(0, P + "a"), start=1, per=4)
        e("  s_nop 1")
        main = []
        for idx in range(16):
            g = []
            if idx % 8 == 0: g.append(lacc(0, idx >> 3))
            if idx == 0: g.append("  s_waitcnt lgkmcnt(8)")
            if idx == 12: g.append("  s_waitcnt lgkmcnt(0)")
            g.append(pv(0, idx))
            main.append(g)
        interleave(main, vadv + softmax_ops(1, P + "b"), start=1, per=4)
        stamp()
        e("  s_barrier")
        stamp()
        for idx in range(16):
            if idx % 8 == 0: e(lacc(1, idx >> 3))
            e(pv(1, idx))
            e(kread(idx))
    else:
        for s_ in adv: e(s_)
        for idx in range(16):
            if idx % 4 == 0: e(f"  s_waitcnt lgkmcnt({min(15, 12+idx)})")
            e(qk(0, idx))
            for s_ in vreads(idx): e(s_)
        for s_ in kadv: e(s_)
        e("  s_nop 3")
        for s_ in softmax_ops(0, P + "a"): e(s_)
        for s_ in vadv: e(s_)
        stamp()
        e("  s_waitcnt lgkmcnt(0)")
        e("  s_barrier")
        stamp()
        for idx in range(16):
            if idx % 8 == 0: e(lacc(0, idx >> 3))
            e(pv(0, idx))
            e(kread(idx))
    e("  s_mov_b32 s41, s42")
    e("  s_add_u32 s40, s40, 1")
    e("  s_cmp_lt_u32 s40, 16")
    e(f"  s_cbranch_scc1 L_loop{P}")
    e("  s_mul_i32 s40, s37, 9")
    e("  s_lshl_b32 s39, s36, 1")
    e("  s_add_u32 s40, s40, s39")
    e("  s_lshl_b32 s40, s40, 7")
    e("  s_lshl_b32 s39, s38, 2")
    e("  s_add_u32 s40, s40, s39")
    e("  s_lshl_b32 s40, s40, 10")
    e("  s_add_u32 s32, s12, s40")
    e("  s_addc_u32 s33, s13, 0")
    e(f"  s_mov_b32 s34, {131072*(T-1) + 4096}")
    e("  s_mov_b32 s35, 0x00020000")
    e("  s_mov_b32 s39, 131072")
    e("  v_lshlrev_b32 v24, 4, v0")
    for tl in range(T):
        e(f"  v_rcp_f32 v{25+tl}, v{Lr[tl]}")
    e("  s_nop 0")
    for tl in range(T):
        for r in range(Or[tl], Or[tl] + 32):
            e(f"  v_mul_f32 v{r}, v{r}, v{25+tl}")
        for j in range(8):
            a = Or[tl] + 4 * j
            e(f"  v_cvt_pk_bf16_f32 v{Qr[tl]+2*j}, v{a}, v{a+1}")
            e(f"  v_cvt_pk_bf16_f32 v{Qr[tl]+1+2*j}, v{a+2}, v{a+3}")
        e("  s_nop 1")
        for s in range(4):
            e(f"  v_permlane16_swap_b32 v{Qr[tl]+4*s}, v{Qr[tl]+2+4*s}")
            e(f"  v_permlane16_swap_b32 v{Qr[tl]+1+4*s}, v{Qr[tl]+3+4*s}")
        so = "0" if tl == 0 else "s39"
        for s in range(4):
            e(f"  buffer_store_dwordx4 v[{Qr[tl]+4*s}:{Qr[tl]+3+4*s}], v24, s[32:35], {so} offen offset:{1024*s} sc1")
    stamp()
    e("  s_mul_i32 s40, s37, 9")
    e("  s_lshl_b32 s41, s36, 1")
    e("  s_add_u32 s40, s40, s41")
    e("  s_lshr_b32 s42, s38, 2")
    e("  s_and_b32 s43, s38, 3")
    e("  s_lshl_b32 s41, s40, 7")
    e("  s_lshl_b32 s3, s42, 4")
    e("  s_add_u32 s41, s41, s3")
    e("  s_lshl_b32 s41, s41, 10")
    e("  s_add_u32 s28, s12, s41")
    e("  s_addc_u32 s29, s13, 0")
    e(f"  s_mov_b32 s30, {131072*(T-1) + 16384}")
    e("  s_mov_b32 s31, 0x00020000")
    tr_addr_setup("o")
    for j in range(8):
        e(f"  v_add_u32 v{14+j}, 0x8000, v{14+j}")
    e("  v_lshlrev_b32 v4, 4, v0")
    e("  v_add_u32 v5, 4096, v4")
    e("  s_mov_b32 s46, 8192")
    e("  s_mov_b32 s47, 131072")
    e("  s_mov_b32 s48, 139264")
    for tl in range(T):
        for r in range(Or[tl], Or[tl] + 32):
            e(f"  v_mov_b32 v{r}, 0")
    e("  s_waitcnt vmcnt(0)")
    e("  s_barrier")
    e("  s_barrier")
    stamp()
    for c in range(4):
        for tl in range(T):
            for ks in range(4 * c, 4 * c + 4):
                r = xreg(T, tl, ks)
                so = ["0", "s46", "s47", "s48"][2 * tl + (ks >> 3)]
                e(f"  buffer_load_dwordx4 v[{r}:{r+3}], v{4 + ((ks>>2)&1)}, s[28:31], {so} offen offset:{1024*(ks&3)} sc1")
    e("  s_lshl_b32 s3, s37, 2")
    e("  s_add_u32 s3, s3, s43")
    e("  s_lshl_b32 s41, s42, 5")
    e("  s_add_u32 s41, s41, s3")
    e("  s_mul_i32 s41, s41, 9")
    e("  s_lshl_b32 s45, s36, 1")
    e("  s_add_u32 s41, s41, s45")
    e("  s_lshl_b32 s41, s41, 13")
    e(f"  s_add_u32 s41, s41, {PART_OFF}")
    e("  s_add_u32 s32, s12, s41")
    e("  s_addc_u32 s33, s13, 0")
    e(f"  s_mov_b32 s34, {8192*T}")
    e("  s_mov_b32 s35, 0x00020000")
    e("  s_mul_i32 s41, s3, 9")
    e("  s_add_u32 s41, s41, s45")
    e("  s_lshl_b32 s41, s41, 3")
    e("  s_add_u32 s41, s41, s42")
    e("  s_lshl_b32 s41, s41, 10")
    e(f"  s_add_u32 s41, s41, {PART_OFF}")
    e("  s_add_u32 s24, s12, s41")
    e("  s_addc_u32 s25, s13, 0")
    e(f"  s_mov_b32 s26, {7*2359296 + 8192*(T-1) + 1024}")
    e("  s_mov_b32 s27, 0x00020000")
    e("  s_mul_i32 s41, s37, 144")
    e("  s_lshl_b32 s45, s36, 5")
    e("  s_add_u32 s41, s41, s45")
    e("  s_lshl_b32 s41, s41, 10")
    e("  s_lshl_b32 s45, s43, 8")
    e("  s_add_u32 s41, s41, s45")
    e("  s_lshl_b32 s45, s42, 5")
    e("  s_add_u32 s41, s41, s45")
    e("  s_add_u32 s16, s74, s41")
    e("  s_addc_u32 s17, s75, 0")
    e("  s_sub_u32 s18, 1179648, s41")
    e("  s_mov_b32 s19, 0x00020000")
    for p in range(4):
        e(f"  s_waitcnt vmcnt({4*T*(3-p)})")
        if p > 0:
            for j in range(8):
                e(f"  v_add_u32 v{14+j}, 0x8000, v{14+j}")
        gemm_pair(T, p, Or, lambda tl, ks: xreg(T, tl, ks), F, 32)
    e("  s_nop 7")
    for tl in range(T):
        so = "0" if tl == 0 else "s46"
        for j in range(8):
            a = Or[tl] + 4 * j
            e(f"  buffer_store_dwordx4 v[{a}:{a+3}], v{4 + (j>>2)}, s[32:35], {so} offen offset:{1024*(j&3)} sc1")
    e("  v_lshlrev_b32 v6, 10, v1")
    e("  v_lshl_add_u32 v6, v2, 3, v6")
    e("  v_add_u32 v7, 16384, v6")
    e("  s_waitcnt vmcnt(0)")
    stamp()
    e("  s_barrier")
    e("  s_barrier")
    stamp()
    for tl in range(T):
        for k2 in range(8):
            e(f"  s_mov_b32 s3, {k2*2359296 + tl*8192}")
            r = 124 + 32 * tl + 4 * k2
            e(f"  buffer_load_dwordx4 v[{r}:{r+3}], v4, s[24:27], s3 offen sc1")
    for tl in range(T):
        base = 124 + 32 * tl
        for k2 in range(1, 8):
            e(f"  s_waitcnt vmcnt({8*(T-1-tl) + 7-k2})")
            for r in range(4):
                e(f"  v_add_f32 v{base+r}, v{base+r}, v{base+4*k2+r}")
        e(f"  v_cvt_pk_bf16_f32 v{base}, v{base}, v{base+1}")
        e(f"  v_cvt_pk_bf16_f32 v{base+1}, v{base+2}, v{base+3}")
        e(f"  buffer_store_dwordx2 v[{base}:{base+1}], v{6+tl}, s[16:19], 0 offen")
    stamp()
    stamp_out()
    e("  s_endpgm")
    for tl in range(T):
        slow_path(tl, P + "ab"[tl])

def producer_path():
    e("  s_sub_u32 s45, s36, 5")
    e("  s_lshl_b32 s46, s45, 14")
    e("  s_cmp_eq_u32 s45, 0")
    e("  s_cselect_b32 s60, s16, s20")
    e("  s_cselect_b32 s61, s17, s21")
    e("  s_mov_b32 s62, 262144")
    e("  s_mov_b32 s63, 0x00020000")
    for n in range(4):
        e(f"  v_add_u32 v24, {4*n}, v2")
        e(f"  v_add_u32 v25, {4*(n&1)}, v2")
        e(f"  v_lshlrev_b32 v25, 1, v25")
        e(f"  v_cndmask_b32 v24, v25, v24, s[48:49]")
        e(f"  v_xor_b32 v24, v24, v1")
        e(f"  v_lshlrev_b32 v24, 4, v24")
        e(f"  v_lshl_add_u32 v{4+n}, v2, 8, v24")
    for b in range(2):
        e(f"  v_add_u32 v24, {4*b}, v2")
        e(f"  v_lshlrev_b32 v24, 1, v24")
        e(f"  v_xor_b32 v24, v24, v1")
        e(f"  v_lshlrev_b32 v24, 4, v24")
        e(f"  v_lshl_add_u32 v{8+b}, v2, 13, v24")
    e("  s_lshl_b32 s47, s45, 19")
    def issue_W(p, phys):
        e(f"  s_add_u32 s64, s46, {phys*32768}")
        e(f"  s_add_u32 s65, s47, {2*p*524288}")
        for n in range(16):
            e(f"  s_mov_b32 m0, s64")
            e(f"  s_add_u32 s64, s64, 1024")
            e(f"  buffer_load_dwordx4 v{8 + ((n>>2)&1)}, s[24:27], s65 offen lds")
            if n < 15:
                e(f"  s_add_u32 s65, s65, 32768")
    def issue_KV(slot, soff):
        e(f"  s_add_u32 s64, s46, {slot}")
        e(f"  s_mov_b32 s65, {soff}")
        for q in range(4):
            e(f"  s_mov_b32 m0, s64")
            e(f"  s_add_u32 s64, s64, 4096")
            for n in range(4):
                e(f"  buffer_load_dwordx4 v{4+n}, s[60:63], s65 offen offset:{1024*n}{NT} lds")
            if q < 3:
                e(f"  s_add_u32 s65, s65, 4096")
    issue_W(0, 4)
    issue_W(1, 2)
    stamp()
    e("  s_waitcnt vmcnt(16)")
    e("  s_barrier")
    stamp()
    issue_KV(0, 0)
    issue_W(2, 3)
    stamp()
    e("  s_waitcnt vmcnt(32)")
    e("  s_barrier")
    stamp()
    issue_W(3, 4)
    issue_KV(32768, 16384)
    stamp()
    e("  s_waitcnt vmcnt(32)")
    e("  s_barrier")
    stamp()
    issue_KV(2*32768, 2*16384)
    stamp()
    e("  s_waitcnt vmcnt(32)")
    e("  s_barrier")
    stamp()
    issue_KV(3*32768, 3*16384)
    e("  s_barrier")
    issue_KV(4*32768, 4*16384)
    e("  s_mov_b32 s40, 0")
    e("  s_mov_b32 s41, 0")
    e(f"  s_mov_b32 s43, {5*16384}")
    e("  s_lshr_b32 s66, s38, 2")
    e("  s_and_b32 s67, s38, 3")
    e("  s_lshl_b32 s3, s66, 19")
    e("  s_lshl_b32 s64, s67, 8")
    e("  s_add_u32 s3, s3, s64")
    e("  s_add_u32 s80, s72, s3")
    e("  s_addc_u32 s81, s73, 0")
    e("  s_sub_u32 s82, 4194304, s3")
    e("  s_mov_b32 s83, 0x00020000")
    for b in range(2):
        e(f"  v_add_u32 v24, {4*b}, v2")
        e(f"  v_lshlrev_b32 v24, 1, v24")
        e(f"  v_xor_b32 v24, v24, v1")
        e(f"  v_lshlrev_b32 v24, 4, v24")
        e(f"  v_lshl_add_u32 v{10+b}, v2, 10, v24")
    e("L_loopP:")
    stamp()
    e("  s_waitcnt vmcnt(48)")
    stamp()
    e("  s_barrier")
    stamp()
    issue_KV("s41", "s43")
    e("  s_add_u32 s41, s41, 32768")
    e("  s_cmp_ge_u32 s41, 163840")
    e("  s_cselect_b32 s41, 0, s41")
    e("  s_add_u32 s43, s43, 16384")
    e("  s_add_u32 s40, s40, 1")
    e("  s_cmp_lt_u32 s40, 11")
    e("  s_cbranch_scc1 L_loopP")
    e("  s_lshl_b32 s43, s45, 16")
    e("  s_mov_b32 s40, 0")
    e("L_loopW:")
    e("  s_waitcnt vmcnt(48)")
    e("  s_barrier")
    e("  s_add_u32 s64, s46, s41")
    e("  s_mov_b32 s65, s43")
    for n in range(16):
        e(f"  s_mov_b32 m0, s64")
        e(f"  s_add_u32 s64, s64, 1024")
        e(f"  buffer_load_dwordx4 v{10 + ((n>>2)&1)}, s[80:83], s65 offen lds")
        if n < 15:
            e(f"  s_add_u32 s65, s65, 4096")
    e("  s_add_u32 s41, s41, 32768")
    e("  s_add_u32 s43, s43, 131072")
    e("  s_add_u32 s40, s40, 1")
    e("  s_cmp_lt_u32 s40, 4")
    e("  s_cbranch_scc1 L_loopW")
    e("  s_barrier")
    e("  s_mov_b32 s84, s76")
    e("  s_mov_b32 s85, s77")
    e("  s_mov_b32 s86, 256")
    e("  s_mov_b32 s87, 0x00020000")
    e("  s_lshl_b32 s3, s37, 3")
    e("  s_add_u32 s3, s3, s66")
    e("  s_lshl_b32 s3, s3, 2")
    e("  v_mov_b32 v21, s3")
    e("  s_lshl_b32 s3, s37, 2")
    e("  s_add_u32 s3, s3, s67")
    e("  s_lshl_b32 s3, s3, 2")
    e("  v_mov_b32 v23, s3")
    e("  v_mov_b32 v20, 1")
    e("  v_mov_b32 v22, 0x10000")
    e("  s_waitcnt vmcnt(0)")
    e("  s_barrier")
    def sync(lab, vdata, vaddr, shift, target):
        e("  s_cmp_lg_u32 s36, 5")
        e(f"  s_cbranch_scc1 L_sd{lab}")
        e("  s_mov_b64 exec, 1")
        e(f"  buffer_atomic_add v{vdata}, v{vaddr}, s[84:87], 0 offen sc1")
        e("  s_mov_b32 s40, 0")
        e(f"L_sp{lab}:")
        e(f"  buffer_load_dword v24, v{vaddr}, s[84:87], 0 offen sc1")
        e("  s_waitcnt vmcnt(0)")
        e("  v_readfirstlane_b32 s3, v24")
        if shift: e(f"  s_lshr_b32 s3, s3, {shift}")
        else: e("  s_and_b32 s3, s3, 0xffff")
        e(f"  s_cmp_ge_u32 s3, {target}")
        e(f"  s_cbranch_scc1 L_sx{lab}")
        e("  s_sleep 1")
        e("  s_add_u32 s40, s40, 1")
        e("  s_cmp_lt_u32 s40, 0x100000")
        e(f"  s_cbranch_scc1 L_sp{lab}")
        e(f"L_sx{lab}:")
        e("  s_mov_b64 exec, -1")
        e(f"L_sd{lab}:")
    sync("1", 20, 21, 0, 4)
    e("  s_barrier")
    e("  s_barrier")
    sync("2", 22, 23, 16, 8)
    e("  s_barrier")
    stamp()
    stamp_out()
    e("  s_endpgm")

def gen_attn():
    e(".globl attn_kernel")
    e(".p2align 8")
    e(".type attn_kernel,@function")
    e("attn_kernel:")
    e("  s_cmp_ge_u32 s2, 256")
    e("  s_cbranch_scc1 L_attn_done")
    e("  s_load_dwordx8 s[4:11], s[0:1], 0")
    e("  s_load_dwordx2 s[12:13], s[0:1], 56")
    e("  s_load_dwordx8 s[72:79], s[0:1], 32")
    if STAMP:
        e("  s_mov_b32 s50, 0")
        e(f"  v_mov_b32 v{SV}, 0")
        e(f"  v_and_b32 v{SV+2}, 63, v0")
        stamp()
    lane_setup()
    e("  s_and_b32 s3, s2, 7")
    e("  s_lshr_b32 s37, s2, 3")
    e("  s_and_b32 s38, s37, 3")
    e("  s_lshl_b32 s3, s3, 2")
    e("  s_add_u32 s38, s38, s3")
    e("  s_lshr_b32 s37, s37, 2")
    e(f"  s_mov_b32 s44, 0x{f2u(CSCALE):08x}")
    e("  s_cmp_eq_u32 s36, 5")
    e("  s_cselect_b64 s[48:49], -1, 0")
    e("  s_waitcnt lgkmcnt(0)")
    e("  s_cmp_ge_u32 s36, 5")
    e("  s_cbranch_scc1 L_prod")
    e("  s_mul_i32 s40, s37, 147456")
    e("  s_add_u32 s28, s4, s40")
    e("  s_addc_u32 s29, s5, 0")
    e("  s_mov_b32 s30, 147456")
    e("  s_mov_b32 s31, 0x00020000")
    e("  s_cmp_eq_u32 s36, 4")
    e("  s_cbranch_scc1 L_c1")
    compute_path(2)
    e("L_c1:")
    compute_path(1)
    e("L_prod:")
    e("  s_lshl_b32 s39, s38, 8")
    e("  s_add_u32 s24, s10, s39")
    e("  s_addc_u32 s25, s11, 0")
    e("  s_sub_u32 s26, 4194304, s39")
    e("  s_mov_b32 s27, 0x00020000")
    e("  s_lshl_b32 s3, s37, 5")
    e("  s_add_u32 s3, s3, s38")
    e("  s_lshl_b32 s39, s3, 18")
    e("  s_lshr_b32 s40, s3, 14")
    e("  s_add_u32 s16, s6, s39")
    e("  s_addc_u32 s17, s7, s40")
    e("  s_add_u32 s20, s8, s39")
    e("  s_addc_u32 s21, s9, s40")
    producer_path()
    e("L_attn_done:")
    e("  s_endpgm")

def xreg2(ks):
    if ks < 4: return 28 + 4 * ks
    if ks < 10: return 76 + 4 * (ks - 4)
    return 140 + 4 * (ks - 10)

def dma_pair(slot, srdA, soffA, vA, srdB, soffB, vB, nt=""):
    e(f"  s_mov_b32 m0, {slot}")
    e(f"  s_add_u32 s46, {slot}, 1024")
    e(f"  buffer_load_dwordx4 v{vA}, {srdA}, {soffA} offen{nt} lds")
    e(f"  s_mov_b32 m0, s46")
    e(f"  s_add_u32 s46, {slot}, 16384")
    e(f"  buffer_load_dwordx4 v{vA+1}, {srdA}, {soffA} offen{nt} lds")
    e(f"  s_mov_b32 m0, s46")
    e(f"  s_add_u32 s46, {slot}, 17408")
    e(f"  buffer_load_dwordx4 v{vB}, {srdB}, {soffB} offen{nt} lds")
    e(f"  s_mov_b32 m0, s46")
    e(f"  s_nop 0")
    e(f"  buffer_load_dwordx4 v{vB+1}, {srdB}, {soffB} offen{nt} lds")

def w_dma_voffs(rowshift, vdst):
    for n, vr in ((0, "v3"), (1, "v24")):
        e(f"  v_and_b32 v25, 3, {vr}")
        e(f"  v_bfe_u32 v27, {vr}, 4, 1")
        e(f"  v_lshl_add_u32 v25, v27, 2, v25")
        e(f"  v_lshlrev_b32 v25, 1, v25")
        e(f"  v_xor_b32 v25, v25, v1")
        e(f"  v_lshlrev_b32 v25, 4, v25")
        e(f"  v_lshl_add_u32 v{vdst+n}, {vr}, {rowshift}, v25")

def gen_oproj():
    e(".globl oproj_kernel")
    e(".p2align 8")
    e(".type oproj_kernel,@function")
    e("oproj_kernel:")
    e("  s_cmp_ge_u32 s2, 256")
    e("  s_cbranch_scc1 L_op_done")
    e("  s_load_dwordx2 s[4:5], s[0:1], 32")
    e("  s_load_dwordx2 s[8:9], s[0:1], 56")
    lane_setup()
    e("  s_and_b32 s37, s2, 7")
    e("  s_lshr_b32 s38, s2, 3")
    e("  s_and_b32 s39, s38, 3")
    e("  s_lshr_b32 s40, s38, 2")
    e("  s_lshl_b32 s3, s36, 3")
    e("  v_add_u32 v3, s3, v2")
    e("  v_add_u32 v24, 4, v3")
    w_dma_voffs(10, 8)
    e("  v_lshlrev_b32 v23, 4, v0")
    e("  v_add_u32 v22, 4096, v23")
    e("  s_waitcnt lgkmcnt(0)")
    e("  s_mul_i32 s3, s40, 9")
    e("  s_add_u32 s3, s3, s36")
    e("  s_lshl_b32 s3, s3, 7")
    e("  s_lshl_b32 s41, s37, 4")
    e("  s_add_u32 s3, s3, s41")
    e("  s_lshl_b32 s3, s3, 10")
    e("  s_add_u32 s28, s8, s3")
    e("  s_addc_u32 s29, s9, 0")
    e("  s_mov_b32 s30, 16384")
    e("  s_mov_b32 s31, 0x00020000")
    e("  s_lshl_b32 s3, s37, 19")
    e("  s_lshl_b32 s41, s39, 8")
    e("  s_add_u32 s3, s3, s41")
    e("  s_add_u32 s24, s4, s3")
    e("  s_addc_u32 s25, s5, 0")
    e("  s_sub_u32 s26, 4194304, s3")
    e("  s_mov_b32 s27, 0x00020000")
    e("  s_lshl_b32 s45, s36, 11")
    e("  s_mov_b32 s50, 8192")
    uid = [0]
    def stage(p):
        uid[0] += 1
        for ks in range(4 * p, 4 * p + 4):
            r = xreg2(ks)
            so = "0" if ks < 8 else "s50"
            e(f"  buffer_load_dwordx4 v[{r}:{r+3}], v{23 - ((ks>>2)&1)}, s[28:31], {so} offen offset:{1024*(ks&3)}")
        e("  s_cmp_ge_u32 s36, 8")
        e(f"  s_cbranch_scc1 L_os{uid[0]}")
        e(f"  s_add_u32 s47, s45, {p*32768}")
        e(f"  s_mov_b32 s48, {(2*p)*65536}")
        e(f"  s_mov_b32 s49, {(2*p+1)*65536}")
        dma_pair("s47", "s[24:27]", "s48", 8, "s[24:27]", "s49", 8)
        e(f"L_os{uid[0]}:")
    stage(0)
    stage(1)
    e("  s_lshl_b32 s3, s37, 5")
    e("  s_add_u32 s3, s3, s38")
    e("  s_mul_i32 s3, s3, 9")
    e("  s_add_u32 s3, s3, s36")
    e("  s_lshl_b32 s3, s3, 13")
    e(f"  s_add_u32 s3, s3, {PART_OFF}")
    e("  s_add_u32 s32, s8, s3")
    e("  s_addc_u32 s33, s9, 0")
    e("  s_mov_b32 s34, 8192")
    e("  s_mov_b32 s35, 0x00020000")
    tr_addr_setup("o")
    for r in range(44, 76):
        e(f"  v_mov_b32 v{r}, 0")
    for p in range(4):
        n_after = 1 if p < 3 else 0
        e("  s_cmp_ge_u32 s36, 8")
        e(f"  s_cbranch_scc1 L_ow8_{p}")
        e(f"  s_waitcnt vmcnt({8*n_after})")
        e(f"  s_branch L_owj_{p}")
        e(f"L_ow8_{p}:")
        e(f"  s_waitcnt vmcnt({4*n_after})")
        e(f"L_owj_{p}:")
        e("  s_barrier")
        if p + 2 < 4:
            stage(p + 2)
        if p > 0:
            for j in range(8):
                e(f"  v_add_u32 v{14+j}, 0x8000, v{14+j}")
        gemm_pair(1, p, [44], lambda tl, ks: xreg2(ks), 100, 32)
    e("  s_nop 7")
    for j in range(8):
        a = 44 + 4 * j
        e(f"  buffer_store_dwordx4 v[{a}:{a+3}], v{23 - (j>>2)}, s[32:35], 0 offen offset:{1024*(j&3)}")
    e("L_op_done:")
    e("  s_endpgm")

def gen_reduce():
    e(".globl reduce_kernel")
    e(".p2align 8")
    e(".type reduce_kernel,@function")
    e("reduce_kernel:")
    e("  s_cmp_ge_u32 s2, 256")
    e("  s_cbranch_scc1 L_rd_done")
    e("  s_load_dwordx2 s[4:5], s[0:1], 40")
    e("  s_load_dwordx2 s[8:9], s[0:1], 56")
    lane_setup()
    e("  s_and_b32 s37, s2, 7")
    e("  s_lshr_b32 s38, s2, 3")
    e("  s_and_b32 s39, s38, 3")
    e("  s_lshr_b32 s40, s38, 2")
    e("  v_lshlrev_b32 v3, 4, v0")
    e("  s_waitcnt lgkmcnt(0)")
    e("  s_mul_i32 s3, s38, 9")
    e("  s_add_u32 s3, s3, s36")
    e("  s_lshl_b32 s3, s3, 3")
    e("  s_add_u32 s3, s3, s37")
    e("  s_lshl_b32 s3, s3, 10")
    e(f"  s_add_u32 s3, s3, {PART_OFF}")
    e("  s_add_u32 s12, s8, s3")
    e("  s_addc_u32 s13, s9, 0")
    e(f"  s_mov_b32 s14, {7*2359296 + 1024}")
    e("  s_mov_b32 s15, 0x00020000")
    for ks in range(8):
        e(f"  s_mov_b32 s{20+ks}, {ks*2359296}")
    for ks in range(8):
        e(f"  buffer_load_dwordx4 v[{8+4*ks}:{11+4*ks}], v3, s[12:15], s{20+ks} offen")
    e("  s_mul_i32 s3, s40, 144")
    e("  s_lshl_b32 s41, s36, 4")
    e("  s_add_u32 s3, s3, s41")
    e("  s_lshl_b32 s3, s3, 10")
    e("  s_lshl_b32 s41, s39, 8")
    e("  s_add_u32 s3, s3, s41")
    e("  s_lshl_b32 s41, s37, 5")
    e("  s_add_u32 s3, s3, s41")
    e("  s_add_u32 s16, s4, s3")
    e("  s_addc_u32 s17, s5, 0")
    e("  s_sub_u32 s18, 1179648, s3")
    e("  s_mov_b32 s19, 0x00020000")
    e("  v_lshlrev_b32 v4, 10, v1")
    e("  v_lshl_add_u32 v4, v2, 3, v4")
    for ks in range(1, 8):
        e(f"  s_waitcnt vmcnt({7-ks})")
        for r in range(4):
            e(f"  v_add_f32 v{8+r}, v{8+r}, v{8+4*ks+r}")
    e("  v_cvt_pk_bf16_f32 v8, v8, v9")
    e("  v_cvt_pk_bf16_f32 v9, v10, v11")
    e("  buffer_store_dwordx2 v[8:9], v4, s[16:19], 0 offen")
    e("L_rd_done:")
    e("  s_endpgm")

def desc(name, vgpr, sgpr=72):
    e(f".amdhsa_kernel {name}")
    e(f"  .amdhsa_next_free_vgpr {vgpr}")
    e(f"  .amdhsa_next_free_sgpr {sgpr}")
    e(f"  .amdhsa_accum_offset {(vgpr+3)//4*4}")
    e("  .amdhsa_group_segment_fixed_size 0")
    e("  .amdhsa_kernarg_size 64")
    e("  .amdhsa_user_sgpr_count 2")
    e("  .amdhsa_user_sgpr_kernarg_segment_ptr 1")
    e("  .amdhsa_system_sgpr_workgroup_id_x 1")
    e(".end_amdhsa_kernel")

out.append(HEADER)
gen_attn()
e('.section .rodata,"a"')
e(".p2align 6")
desc("attn_kernel", 256, 96)
txt = "\n".join(out) + "\n"
for ln in txt.split("\n"):
    m = re.search(r"buffer_.*offset:(\d+)", ln)
    if m: assert int(m.group(1)) < 4096, ln
open(sys.argv[1], "w").write(txt)
```

```python
import math, sys, struct, re

out = []
def e(s=""):
    out.append(s)

ARGS = sys.argv[2:]
STAMP = "stamp" in ARGS
NT = "" if "nont" in ARGS else " nt"

HEADER = """; Kernarg layout for this problem (64 bytes, ptrs only, base s[0:1]):
; @launch kernel=attn_kernel grid=(256,1,1) block=(512,1,1) lds=163840
.amdgcn_target "amdgcn-amd-amdhsa--gfx950"
.text
"""

def f2u(f):
    return struct.unpack("<I", struct.pack("<f", f))[0]

CSCALE = (128 ** -0.5) * math.log2(math.e)
PART_OFF = 16777216
STAMP_OFF = 67108864
SV = 252

def stamp():
    if not STAMP: return
    e("  s_memrealtime s[52:53]" if "rt" in ARGS else "  s_memtime s[52:53]")
    e("  s_waitcnt lgkmcnt(0)")
    e(f"  v_mov_b32 v{SV+1}, s52")
    e(f"  v_cmp_eq_u32 s[54:55], s50, v{SV+2}")
    e("  s_nop 1")
    e(f"  v_cndmask_b32 v{SV}, v{SV}, v{SV+1}, s[54:55]")
    e("  s_add_u32 s50, s50, 1")

def stamp_out():
    if not STAMP: return
    e("  s_mul_i32 s3, s2, 9")
    e("  s_add_u32 s3, s3, s36")
    e("  s_lshl_b32 s3, s3, 8")
    e(f"  s_add_u32 s3, s3, {STAMP_OFF}")
    e("  s_add_u32 s56, s12, s3")
    e("  s_addc_u32 s57, s13, 0")
    e("  s_mov_b32 s58, 256")
    e("  s_mov_b32 s59, 0x00020000")
    e(f"  v_lshlrev_b32 v{SV+1}, 2, v{SV+2}")
    e(f"  buffer_store_dword v{SV}, v{SV+1}, s[56:59], 0 offen")

def lane_setup():
    e("  v_lshrrev_b32 v1, 6, v0")
    e("  v_and_b32 v0, 63, v0")
    e("  s_nop 0")
    e("  v_readfirstlane_b32 s36, v1")
    e("  v_and_b32 v1, 15, v0")
    e("  v_lshrrev_b32 v2, 4, v0")

def tr_addr_setup(mode="x"):
    e("  v_bfe_u32 v24, v0, 2, 2")
    e("  v_and_b32 v25, 3, v0")
    e("  v_and_b32 v26, 1, v2")
    if mode == "x":
        e("  v_lshl_add_u32 v27, v2, 4, v24")
    else:
        e("  v_lshl_add_u32 v27, v26, 4, v24")
        e("  v_lshrrev_b32 v3, 1, v2")
        e("  v_lshl_add_u32 v27, v3, 3, v27")
    e("  v_lshl_add_u32 v26, v26, 2, v24")
    e("  v_lshlrev_b32 v27, 8, v27")
    e("  v_lshrrev_b32 v3, 1, v25")
    e("  v_lshl_add_u32 v27, v3, 4, v27")
    e("  v_and_b32 v3, 1, v25")
    e("  v_lshl_add_u32 v27, v3, 3, v27")
    for j in range(8):
        e(f"  v_xor_b32 v3, {j}, v26")
        e(f"  v_lshl_add_u32 v{14+j}, v3, 5, v27")

MFMA = "v_mfma_f32_16x16x32_bf16"
Qr = [28, 44]
Or = [60, 92]
Sr = [124, 140]
ONES = 156
Lr = [160, 164]
F = 168
NM = [232, 236]
Tm = [(24, 25), (6, 7)]
THR = ["s60", "s62"]
FLR = ["s61", "s63"]
def xreg(tile, ks):
    pool = list(range(28, 60, 4)) + list(range(124, 168, 4)) + list(range(200, 252, 4))
    return pool[tile * 16 + ks]

def gemm_pair(T, p, hbrows):
    WF = F
    def reads(kidx, j):
        tile, hb = kidx >> 1, kidx & 1
        for hh in range(2):
            off = tile * 16384 + (hbrows * hb + 4 * hh) * 256
            r = WF + 4 * j + 2 * hh
            e(f"  ds_read_b64_tr_b16 v[{r}:{r+1}], v{14+j} offset:{off}")
    for j in range(8):
        reads(0, j)
    for kidx in range(4):
        for j in range(8):
            if j % 2 == 0:
                e(f"  s_waitcnt lgkmcnt({12 if kidx < 3 else 12-2*j})")
            a = WF + 4 * j
            for tl in range(T):
                xr = xreg(tl, 4 * p + kidx)
                d = Or[tl] + 4 * j
                e(f"  {MFMA} v[{d}:{d+3}], v[{a}:{a+3}], v[{xr}:{xr+3}], v[{d}:{d+3}]")
            if kidx < 3:
                reads(kidx + 1, j)

def softmax_ops(tl, lab, n=16):
    S = [Sr[tl] + i for i in range(n)]
    a, b = Tm[tl]
    L = []
    if n == 16:
        L.append(f"  v_max3_f32 v{a}, v{S[0]}, v{S[1]}, v{S[2]}")
        L.append(f"  v_max3_f32 v{b}, v{S[3]}, v{S[4]}, v{S[5]}")
        L.append(f"  v_max3_f32 v{a}, v{a}, v{S[6]}, v{S[7]}")
        L.append(f"  v_max3_f32 v{b}, v{b}, v{S[8]}, v{S[9]}")
        L.append(f"  v_max3_f32 v{a}, v{a}, v{S[10]}, v{S[11]}")
        L.append(f"  v_max3_f32 v{b}, v{b}, v{S[12]}, v{S[13]}")
        L.append(f"  v_max3_f32 v{a}, v{a}, v{S[14]}, v{S[15]}")
        L.append(f"  v_max_f32 v{a}, v{a}, v{b}")
    else:
        L.append(f"  v_max3_f32 v{a}, v{S[0]}, v{S[1]}, v{S[2]}")
        L.append(f"  v_max3_f32 v{b}, v{S[3]}, v{S[4]}, v{S[5]}")
        L.append(f"  v_max3_f32 v{a}, v{a}, v{S[6]}, v{S[7]}")
        L.append(f"  v_max_f32 v{a}, v{a}, v{b}")
    L.append(f"  v_cmp_lt_f32 vcc, {THR[tl]}, v{a}\n  s_cbranch_vccnz L_slow{lab}\nL_back{lab}:")
    for i in range(n):
        L.append(f"  v_exp_f32 v{S[i]}, v{S[i]}")
    L.append("  s_nop 0")
    for i in range(n // 2):
        L.append(f"  v_cvt_pk_bf16_f32 v{S[i]}, v{S[2*i]}, v{S[2*i+1]}")
    return L

def slow_path(tl, lab, n=16):
    a, b = Tm[tl]
    e(f"L_slow{lab}:")
    e(f"  v_mov_b32 v{b}, v{a}")
    e(f"  s_nop 1")
    e(f"  v_permlane32_swap_b32 v{a}, v{b}")
    e(f"  v_max_f32 v{a}, v{a}, v{b}")
    e(f"  v_mov_b32 v{b}, v{a}")
    e(f"  s_nop 1")
    e(f"  v_permlane16_swap_b32 v{a}, v{b}")
    e(f"  v_max_f32 v{a}, v{a}, v{b}")
    e(f"  v_max_f32 v{a}, {FLR[tl]}, v{a}")
    e(f"  v_sub_f32 v{b}, 0, v{a}")
    e(f"  v_min_f32 v{b}, 0, v{b}")
    e(f"  v_exp_f32 v{b}, v{b}")
    e(f"  s_mov_b32 {THR[tl]}, 0x41000000")
    e(f"  s_mov_b32 {FLR[tl]}, 0")
    for r in list(range(NM[tl], NM[tl] + 4)) + list(range(Sr[tl], Sr[tl] + n)):
        e(f"  v_sub_f32 v{r}, v{r}, v{a}")
    for r in list(range(Or[tl], Or[tl] + 32)) + list(range(Lr[tl], Lr[tl] + 4)):
        e(f"  v_mul_f32 v{r}, v{r}, v{b}")
    e(f"  s_branch L_back{lab}")

def interleave(main, fill, start=0, per=4):
    fi = 0
    for gi, g in enumerate(main):
        for s_ in g: e(s_)
        if gi >= start:
            for _ in range(per):
                if fi < len(fill):
                    e(fill[fi]); fi += 1
    while fi < len(fill):
        e(fill[fi]); fi += 1

def compute_path(T):
    P = f"c{T}"
    H = (T == 1)
    if H:
        e("  s_mov_b32 s3, 128")
        e("  s_sub_u32 s49, s36, 4")
    else:
        e("  s_lshl_b32 s3, s36, 5")
    e("  v_add_u32 v25, s3, v1")
    e("  v_lshlrev_b32 v25, 10, v25")
    e("  v_lshl_add_u32 v4, v2, 5, v25")
    if T == 2:
        e("  v_add_u32 v5, 16384, v4")
    def xloads(c):
        for tl in range(T):
            for ks in range(4 * c, 4 * c + 4):
                r = xreg(tl, ks)
                e(f"  buffer_load_dwordx4 v[{r}:{r+3}], v{4+tl}, s[28:31], 0 offen offset:{128*(ks>>1) + 16*(ks&1)}")
    xloads(0)
    tr_addr_setup("x")
    for tl in range(T):
        for r in range(Or[tl], Or[tl] + 32):
            e(f"  v_mov_b32 v{r}, 0")
    wphys = [4, 2, 3, 4]
    prev = 0
    for p in range(4):
        stamp()
        e("  s_barrier")
        stamp()
        if p + 1 < 4:
            xloads(p + 1)
        delta = wphys[p] * 32768 - prev
        prev = wphys[p] * 32768
        e(f"  s_mov_b32 s3, {delta & 0xffffffff}")
        for j in range(8):
            e(f"  v_add_u32 v{14+j}, s3, v{14+j}")
        e(f"  s_waitcnt vmcnt({4*T*(min(3, p+1) - p)})")
        gemm_pair(T, p, 8)
    e(f"  v_mul_u32_u24 v3, {12*256}, v2")
    e(f"  v_add_u32 v3, {prev}, v3")
    if H:
        e("  s_lshl_b32 s3, s49, 13")
        e("  v_subrev_u32 v3, s3, v3")
    for j in range(8):
        e(f"  v_sub_u32 v{14+j}, v{14+j}, v3")
    e("  v_and_b32 v26, 1, v2")
    e("  v_lshrrev_b32 v27, 1, v2")
    e("  v_lshl_add_u32 v26, v26, 1, v27")
    e("  v_xor_b32 v26, v26, v1")
    for s in range(4):
        e(f"  v_xor_b32 v3, {4*s}, v26")
        e(f"  v_lshlrev_b32 v3, 4, v3")
        e(f"  v_lshl_add_u32 v{10+s}, v1, 8, v3")
        if H:
            e(f"  v_add_u32 v{10+s}, s3, v{10+s}")
    e("  s_barrier")
    NF = 8 if H else 16
    def kread(idx):
        t, s = idx >> 2, idx & 3
        a = F + 4 * idx
        return f"  ds_read_b128 v[{a}:{a+3}], v{10+s} offset:{t*4096}"
    for idx in range(NF):
        e(kread(idx))
    for tl in range(T):
        for r in range(Or[tl], Or[tl] + 32):
            e(f"  v_mul_f32 v{r}, s44, v{r}")
        for j in range(8):
            a = Or[tl] + 4 * j
            e(f"  v_cvt_pk_bf16_f32 v{Qr[tl]+2*j}, v{a}, v{a+1}")
            e(f"  v_cvt_pk_bf16_f32 v{Qr[tl]+1+2*j}, v{a+2}, v{a+3}")
    for tl in range(T):
        for r in range(Or[tl], Or[tl] + 32):
            e(f"  v_mov_b32 v{r}, 0")
    for tl in range(T):
        for s in range(4):
            e(f"  v_permlane16_swap_b32 v{Qr[tl]+4*s}, v{Qr[tl]+2+4*s}")
            e(f"  v_permlane16_swap_b32 v{Qr[tl]+1+4*s}, v{Qr[tl]+3+4*s}")
    for r in range(ONES, ONES + 4):
        e(f"  v_mov_b32 v{r}, 0x3f803f80")
    for tl in range(T):
        for r in list(range(Lr[tl], Lr[tl] + 4)) + list(range(NM[tl], NM[tl] + 4)):
            e(f"  v_mov_b32 v{r}, 0")
        e(f"  s_mov_b32 {THR[tl]}, 0xff800000")
        e(f"  s_mov_b32 {FLR[tl]}, 0xff800000")
    e("  s_mov_b32 s40, 0")
    e("  s_mov_b32 s41, 0")
    e(f"L_loop{P}:")
    stamp()
    def qk(tl, idx):
        t, s = idx >> 2, idx & 3
        r = F + 4 * idx
        d = Sr[tl] + 4 * t
        q = Qr[tl] + 4 * s
        c = f"v[{NM[tl]}:{NM[tl]+3}]" if s == 0 else f"v[{d}:{d+3}]"
        return f"  {MFMA} v[{d}:{d+3}], v[{r}:{r+3}], v[{q}:{q+3}], {c}"
    def vreads(idx):
        r = F + 4 * idx
        u, j = idx >> 3, idx & 7
        return [f"  ds_read_b64_tr_b16 v[{r+2*hh}:{r+2*hh+1}], v{14+j} offset:{16384 + u*8192 + hh*4096}" for hh in range(2)]
    def pv(tl, idx):
        u, j = idx >> 3, idx & 7
        a = F + 4 * idx
        d = Or[tl] + 4 * j
        p = Sr[tl] + 4 * u
        return f"  {MFMA} v[{d}:{d+3}], v[{a}:{a+3}], v[{p}:{p+3}], v[{d}:{d+3}]"
    def lacc(tl, u):
        p = Sr[tl] + 4 * u
        l = Lr[tl]
        return f"  {MFMA} v[{l}:{l+3}], v[{ONES}:{ONES+3}], v[{p}:{p+3}], v[{l}:{l+3}]"
    adv = ["  s_add_u32 s42, s41, 32768", "  s_cmp_ge_u32 s42, 163840", "  s_cselect_b32 s42, 0, s42", "  s_sub_u32 s3, s42, s41"]
    kadv = [f"  v_add_u32 v{r}, s3, v{r}" for r in range(10, 14)]
    vadv = [f"  v_add_u32 v{r}, s3, v{r}" for r in range(14, 22)]
    for s_ in adv: e(s_)
    if T == 2:
        for idx in range(16):
            if idx % 4 == 0: e(f"  s_waitcnt lgkmcnt({12-idx})")
            e(qk(0, idx))
        main = [[qk(1, idx)] + vreads(idx) for idx in range(16)]
        interleave(main, kadv + softmax_ops(0, P + "a"), start=1, per=3)
        e("  s_nop 1")
        main = []
        for idx in range(16):
            g = []
            if idx % 8 == 0: g.append(lacc(0, idx >> 3))
            if idx == 0: g.append("  s_waitcnt lgkmcnt(8)")
            if idx == 12: g.append("  s_waitcnt lgkmcnt(0)")
            g.append(pv(0, idx))
            main.append(g)
        interleave(main, vadv + softmax_ops(1, P + "b"), start=1, per=3)
        stamp()
        e("  s_barrier")
        stamp()
        for idx in range(16):
            if idx % 8 == 0: e(lacc(1, idx >> 3))
            e(pv(1, idx))
            e(kread(idx))
    else:
        for idx in range(8):
            if idx % 4 == 0: e(f"  s_waitcnt lgkmcnt({4+idx})")
            e(qk(0, idx))
            for s_ in vreads(idx): e(s_)
        for s_ in kadv: e(s_)
        e("  s_nop 3")
        for s_ in softmax_ops(0, P + "a", 8): e(s_)
        for s_ in vadv: e(s_)
        stamp()
        e("  s_waitcnt lgkmcnt(0)")
        e("  s_barrier")
        stamp()
        e(lacc(0, 0))
        for idx in range(8):
            e(pv(0, idx))
            e(kread(idx))
    e("  s_mov_b32 s41, s42")
    e("  s_add_u32 s40, s40, 1")
    e("  s_cmp_lt_u32 s40, 16")
    e(f"  s_cbranch_scc1 L_loop{P}")
    e("  v_lshlrev_b32 v4, 4, v0")
    e("  v_add_u32 v5, 4096, v4")
    if H:
        e("  s_cmp_eq_u32 s49, 0")
        e("  s_cbranch_scc1 L_mrg_r")
        e("  s_nop 4")
        for j in range(8):
            a = Or[0] + 4 * j
            e(f"  ds_write_b128 v{4 + (j>>2)}, v[{a}:{a+3}] offset:{1024*(j&3)}")
        e(f"  v_mov_b32 v{Lr[0]+1}, v{NM[0]}")
        e(f"  ds_write_b64 v4, v[{Lr[0]}:{Lr[0]+1}] offset:8192")
        e("  s_waitcnt lgkmcnt(0)")
        e("  s_barrier")
        e("  s_barrier")
        e("  s_barrier")
        e("  s_barrier")
        e("  s_barrier")
        stamp_out()
        e("  s_endpgm")
        e("L_mrg_r:")
        e("  s_waitcnt lgkmcnt(0)")
        e("  s_barrier")
        for j in range(8):
            a = F + 4 * j
            e(f"  ds_read_b128 v[{a}:{a+3}], v{4 + (j>>2)} offset:{1024*(j&3)}")
        e(f"  ds_read_b64 v[24:25], v4 offset:8192")
        e("  s_waitcnt lgkmcnt(0)")
        e(f"  v_min_f32 v26, v25, v{NM[0]}")
        e(f"  v_sub_f32 v27, v26, v{NM[0]}")
        e(f"  v_sub_f32 v26, v26, v25")
        e(f"  v_exp_f32 v27, v27")
        e(f"  v_exp_f32 v26, v26")
        e("  s_nop 0")
        e(f"  v_mul_f32 v{Lr[0]}, v{Lr[0]}, v27")
        e(f"  v_fmac_f32 v{Lr[0]}, v24, v26")
        for r in range(32):
            e(f"  v_mul_f32 v{Or[0]+r}, v{Or[0]+r}, v27")
            e(f"  v_fmac_f32 v{Or[0]+r}, v{F+r}, v26")
    else:
        e("  s_barrier")
    if H: e("  s_mov_b32 s45, 8")
    else: e("  s_lshl_b32 s45, s36, 1")
    e("  s_mul_i32 s40, s37, 9")
    e("  s_add_u32 s40, s40, s45")
    e("  s_lshl_b32 s41, s40, 7")
    e("  s_lshl_b32 s39, s38, 2")
    e("  s_add_u32 s41, s41, s39")
    e("  s_lshl_b32 s41, s41, 10")
    e("  s_add_u32 s32, s12, s41")
    e("  s_addc_u32 s33, s13, 0")
    e(f"  s_mov_b32 s34, {131072*(T-1) + 4096}")
    e("  s_mov_b32 s35, 0x00020000")
    e("  s_mov_b32 s46, 8192")
    e("  s_mov_b32 s47, 131072")
    e("  s_mov_b32 s48, 139264")
    for tl in range(T):
        e(f"  v_rcp_f32 v{25+tl}, v{Lr[tl]}")
    e("  s_nop 0")
    for tl in range(T):
        for r in range(Or[tl], Or[tl] + 32):
            e(f"  v_mul_f32 v{r}, v{r}, v{25+tl}")
        for j in range(8):
            a = Or[tl] + 4 * j
            e(f"  v_cvt_pk_bf16_f32 v{Qr[tl]+2*j}, v{a}, v{a+1}")
            e(f"  v_cvt_pk_bf16_f32 v{Qr[tl]+1+2*j}, v{a+2}, v{a+3}")
        e("  s_nop 1")
        for s in range(4):
            e(f"  v_permlane16_swap_b32 v{Qr[tl]+4*s}, v{Qr[tl]+2+4*s}")
            e(f"  v_permlane16_swap_b32 v{Qr[tl]+1+4*s}, v{Qr[tl]+3+4*s}")
        so = "0" if tl == 0 else "s47"
        for s in range(4):
            e(f"  buffer_store_dwordx4 v[{Qr[tl]+4*s}:{Qr[tl]+3+4*s}], v4, s[32:35], {so} offen offset:{1024*s} sc1")
    stamp()
    e("  s_lshr_b32 s42, s38, 2")
    e("  s_and_b32 s43, s38, 3")
    e("  s_lshl_b32 s41, s40, 7")
    e("  s_lshl_b32 s3, s42, 4")
    e("  s_add_u32 s41, s41, s3")
    e("  s_lshl_b32 s41, s41, 10")
    e("  s_add_u32 s28, s12, s41")
    e("  s_addc_u32 s29, s13, 0")
    e(f"  s_mov_b32 s30, {131072*(T-1) + 16384}")
    e("  s_mov_b32 s31, 0x00020000")
    tr_addr_setup("o")
    for j in range(8):
        e(f"  v_add_u32 v{14+j}, 0x8000, v{14+j}")
    for tl in range(T):
        for r in range(Or[tl], Or[tl] + 32):
            e(f"  v_mov_b32 v{r}, 0")
    e("  s_lshl_b32 s3, s37, 2")
    e("  s_add_u32 s3, s3, s43")
    e("  s_lshl_b32 s41, s42, 5")
    e("  s_add_u32 s41, s41, s3")
    e("  s_mul_i32 s41, s41, 9")
    e("  s_add_u32 s41, s41, s45")
    e("  s_lshl_b32 s41, s41, 13")
    e(f"  s_add_u32 s41, s41, {PART_OFF}")
    e("  s_add_u32 s20, s12, s41")
    e("  s_addc_u32 s21, s13, 0")
    e(f"  s_mov_b32 s22, {8192*T}")
    e("  s_mov_b32 s23, 0x00020000")
    e("  s_mul_i32 s41, s3, 9")
    e("  s_add_u32 s41, s41, s45")
    e("  s_lshl_b32 s41, s41, 3")
    e("  s_add_u32 s41, s41, s42")
    e("  s_lshl_b32 s41, s41, 10")
    e(f"  s_add_u32 s41, s41, {PART_OFF}")
    e("  s_add_u32 s24, s12, s41")
    e("  s_addc_u32 s25, s13, 0")
    e(f"  s_mov_b32 s26, {7*2359296 + 8192*(T-1) + 1024}")
    e("  s_mov_b32 s27, 0x00020000")
    e("  s_mul_i32 s41, s37, 144")
    e("  s_lshl_b32 s39, s45, 4")
    e("  s_add_u32 s41, s41, s39")
    e("  s_lshl_b32 s41, s41, 10")
    e("  s_lshl_b32 s39, s43, 8")
    e("  s_add_u32 s41, s41, s39")
    e("  s_lshl_b32 s39, s42, 5")
    e("  s_add_u32 s41, s41, s39")
    e("  s_add_u32 s16, s74, s41")
    e("  s_addc_u32 s17, s75, 0")
    e("  s_sub_u32 s18, 1179648, s41")
    e("  s_mov_b32 s19, 0x00020000")
    e("  v_lshlrev_b32 v6, 10, v1")
    e("  v_lshl_add_u32 v6, v2, 3, v6")
    e("  v_add_u32 v7, 16384, v6")
    e("  s_waitcnt vmcnt(0)")
    e("  s_barrier")
    e("  s_barrier")
    stamp()
    for c in range(4):
        for tl in range(T):
            for ks in range(4 * c, 4 * c + 4):
                r = xreg(tl, ks)
                so = ["0", "s46", "s47", "s48"][2 * tl + (ks >> 3)]
                e(f"  buffer_load_dwordx4 v[{r}:{r+3}], v{4 + ((ks>>2)&1)}, s[28:31], {so} offen offset:{1024*(ks&3)} sc1")
    for p in range(4):
        e(f"  s_waitcnt vmcnt({4*T*(3-p)})")
        if p > 0:
            for j in range(8):
                e(f"  v_add_u32 v{14+j}, 0x8000, v{14+j}")
        gemm_pair(T, p, 32)
    e("  s_nop 7")
    for tl in range(T):
        so = "0" if tl == 0 else "s46"
        for j in range(8):
            a = Or[tl] + 4 * j
            e(f"  buffer_store_dwordx4 v[{a}:{a+3}], v{4 + (j>>2)}, s[20:23], {so} offen offset:{1024*(j&3)} sc1")
    e("  s_waitcnt vmcnt(0)")
    stamp()
    e("  s_barrier")
    e("  s_barrier")
    stamp()
    for tl in range(T):
        for k2 in range(8):
            e(f"  s_mov_b32 s3, {k2*2359296 + tl*8192}")
            r = 124 + 32 * tl + 4 * k2
            e(f"  buffer_load_dwordx4 v[{r}:{r+3}], v4, s[24:27], s3 offen sc1")
    for tl in range(T):
        base = 124 + 32 * tl
        for k2 in range(1, 8):
            e(f"  s_waitcnt vmcnt({8*(T-1-tl) + 7-k2})")
            for r in range(4):
                e(f"  v_add_f32 v{base+r}, v{base+r}, v{base+4*k2+r}")
        e(f"  v_cvt_pk_bf16_f32 v{base}, v{base}, v{base+1}")
        e(f"  v_cvt_pk_bf16_f32 v{base+1}, v{base+2}, v{base+3}")
        e(f"  buffer_store_dwordx2 v[{base}:{base+1}], v{6+tl}, s[16:19], 0 offen")
    stamp()
    stamp_out()
    e("  s_endpgm")
    for tl in range(T):
        slow_path(tl, P + "ab"[tl], 8 if H else 16)

def producer_path():
    e("  s_sub_u32 s45, s36, 6")
    e("  s_lshl_b32 s46, s45, 14")
    e("  s_cmp_eq_u32 s45, 0")
    e("  s_cselect_b32 s60, s16, s20")
    e("  s_cselect_b32 s61, s17, s21")
    e("  s_mov_b32 s62, 262144")
    e("  s_mov_b32 s63, 0x00020000")
    for n in range(4):
        e(f"  v_add_u32 v24, {4*n}, v2")
        e(f"  v_add_u32 v25, {4*(n&1)}, v2")
        e(f"  v_lshlrev_b32 v25, 1, v25")
        e(f"  v_cndmask_b32 v24, v25, v24, s[48:49]")
        e(f"  v_xor_b32 v24, v24, v1")
        e(f"  v_lshlrev_b32 v24, 4, v24")
        e(f"  v_lshl_add_u32 v{4+n}, v2, 8, v24")
    for b in range(2):
        e(f"  v_add_u32 v24, {4*b}, v2")
        e(f"  v_lshlrev_b32 v24, 1, v24")
        e(f"  v_xor_b32 v24, v24, v1")
        e(f"  v_lshlrev_b32 v24, 4, v24")
        e(f"  v_lshl_add_u32 v{8+b}, v2, 13, v24")
        e(f"  v_lshl_add_u32 v{10+b}, v2, 10, v24")
    e("  s_lshl_b32 s47, s45, 19")
    def issue_W(p, phys):
        e(f"  s_add_u32 s64, s46, {phys*32768}")
        e(f"  s_add_u32 s65, s47, {2*p*524288}")
        for n in range(16):
            e(f"  s_mov_b32 m0, s64")
            e(f"  s_add_u32 s64, s64, 1024")
            e(f"  buffer_load_dwordx4 v{8 + ((n>>2)&1)}, s[24:27], s65 offen lds")
            if n < 15:
                e(f"  s_add_u32 s65, s65, 32768")
    def issue_KV(slot, soff):
        e(f"  s_add_u32 s64, s46, {slot}")
        e(f"  s_mov_b32 s65, {soff}")
        for q in range(4):
            e(f"  s_mov_b32 m0, s64")
            e(f"  s_add_u32 s64, s64, 4096")
            for n in range(4):
                e(f"  buffer_load_dwordx4 v{4+n}, s[60:63], s65 offen offset:{1024*n}{NT} lds")
            if q < 3:
                e(f"  s_add_u32 s65, s65, 4096")
    issue_W(0, 4)
    issue_W(1, 2)
    stamp()
    e("  s_waitcnt vmcnt(16)")
    e("  s_barrier")
    stamp()
    issue_KV(0, 0)
    issue_W(2, 3)
    stamp()
    e("  s_waitcnt vmcnt(32)")
    e("  s_barrier")
    stamp()
    issue_W(3, 4)
    issue_KV(32768, 16384)
    stamp()
    e("  s_waitcnt vmcnt(32)")
    e("  s_barrier")
    stamp()
    issue_KV(2*32768, 2*16384)
    stamp()
    e("  s_waitcnt vmcnt(32)")
    e("  s_barrier")
    stamp()
    issue_KV(3*32768, 3*16384)
    e("  s_barrier")
    issue_KV(4*32768, 4*16384)
    e("  s_mov_b32 s40, 0")
    e("  s_mov_b32 s41, 0")
    e(f"  s_mov_b32 s43, {5*16384}")
    e("  s_lshr_b32 s66, s38, 2")
    e("  s_and_b32 s67, s38, 3")
    e("  s_lshl_b32 s3, s66, 19")
    e("  s_lshl_b32 s64, s67, 8")
    e("  s_add_u32 s3, s3, s64")
    e("  s_add_u32 s80, s72, s3")
    e("  s_addc_u32 s81, s73, 0")
    e("  s_sub_u32 s82, 4194304, s3")
    e("  s_mov_b32 s83, 0x00020000")
    e("L_loopP:")
    stamp()
    e("  s_waitcnt vmcnt(48)")
    stamp()
    e("  s_barrier")
    stamp()
    issue_KV("s41", "s43")
    e("  s_add_u32 s41, s41, 32768")
    e("  s_cmp_ge_u32 s41, 163840")
    e("  s_cselect_b32 s41, 0, s41")
    e("  s_add_u32 s43, s43, 16384")
    e("  s_add_u32 s40, s40, 1")
    e("  s_cmp_lt_u32 s40, 11")
    e("  s_cbranch_scc1 L_loopP")
    e("  s_lshl_b32 s43, s45, 16")
    e("  s_mov_b32 s40, 0")
    e("L_loopW:")
    e("  s_waitcnt vmcnt(48)")
    e("  s_barrier")
    e("  s_add_u32 s64, s46, s41")
    e("  s_mov_b32 s65, s43")
    for n in range(16):
        e(f"  s_mov_b32 m0, s64")
        e(f"  s_add_u32 s64, s64, 1024")
        e(f"  buffer_load_dwordx4 v{10 + ((n>>2)&1)}, s[80:83], s65 offen lds")
        if n < 15:
            e(f"  s_add_u32 s65, s65, 4096")
    e("  s_add_u32 s41, s41, 32768")
    e("  s_add_u32 s43, s43, 131072")
    e("  s_add_u32 s40, s40, 1")
    e("  s_cmp_lt_u32 s40, 4")
    e("  s_cbranch_scc1 L_loopW")
    e("  s_barrier")
    e("  s_mov_b32 s84, s76")
    e("  s_mov_b32 s85, s77")
    e("  s_mov_b32 s86, 256")
    e("  s_mov_b32 s87, 0x00020000")
    e("  s_lshl_b32 s3, s37, 3")
    e("  s_add_u32 s3, s3, s66")
    e("  s_lshl_b32 s3, s3, 2")
    e("  v_mov_b32 v21, s3")
    e("  s_lshl_b32 s3, s37, 2")
    e("  s_add_u32 s3, s3, s67")
    e("  s_lshl_b32 s3, s3, 2")
    e("  v_mov_b32 v23, s3")
    e("  v_mov_b32 v20, 1")
    e("  v_mov_b32 v22, 0x10000")
    e("  s_barrier")
    e("  s_waitcnt vmcnt(0)")
    e("  s_barrier")
    def sync(lab, vdata, vaddr, shift, target):
        e("  s_cmp_lg_u32 s36, 6")
        e(f"  s_cbranch_scc1 L_sd{lab}")
        e("  s_mov_b64 exec, 1")
        e(f"  buffer_atomic_add v{vdata}, v{vaddr}, s[84:87], 0 offen sc1")
        e("  s_mov_b32 s40, 0")
        e(f"L_sp{lab}:")
        e(f"  buffer_load_dword v24, v{vaddr}, s[84:87], 0 offen sc1")
        e("  s_waitcnt vmcnt(0)")
        e("  v_readfirstlane_b32 s3, v24")
        if shift: e(f"  s_lshr_b32 s3, s3, {shift}")
        else: e("  s_and_b32 s3, s3, 0xffff")
        e(f"  s_cmp_ge_u32 s3, {target}")
        e(f"  s_cbranch_scc1 L_sx{lab}")
        e("  s_sleep 1")
        e("  s_add_u32 s40, s40, 1")
        e("  s_cmp_lt_u32 s40, 0x100000")
        e(f"  s_cbranch_scc1 L_sp{lab}")
        e(f"L_sx{lab}:")
        e("  s_mov_b64 exec, -1")
        e(f"L_sd{lab}:")
    sync("1", 20, 21, 0, 4)
    e("  s_barrier")
    e("  s_barrier")
    sync("2", 22, 23, 16, 8)
    e("  s_barrier")
    stamp()
    stamp_out()
    e("  s_endpgm")

def gen_attn():
    e(".globl attn_kernel")
    e(".p2align 8")
    e(".type attn_kernel,@function")
    e("attn_kernel:")
    e("  s_cmp_ge_u32 s2, 256")
    e("  s_cbranch_scc1 L_attn_done")
    e("  s_load_dwordx8 s[4:11], s[0:1], 0")
    e("  s_load_dwordx2 s[12:13], s[0:1], 56")
    e("  s_load_dwordx8 s[72:79], s[0:1], 32")
    if STAMP:
        e("  s_mov_b32 s50, 0")
        e(f"  v_mov_b32 v{SV}, 0")
        e(f"  v_and_b32 v{SV+2}, 63, v0")
        stamp()
    lane_setup()
    e("  s_and_b32 s3, s2, 7")
    e("  s_lshr_b32 s37, s2, 3")
    e("  s_and_b32 s38, s37, 3")
    e("  s_lshl_b32 s3, s3, 2")
    e("  s_add_u32 s38, s38, s3")
    e("  s_lshr_b32 s37, s37, 2")
    e(f"  s_mov_b32 s44, 0x{f2u(CSCALE):08x}")
    e("  s_cmp_eq_u32 s36, 6")
    e("  s_cselect_b64 s[48:49], -1, 0")
    e("  s_waitcnt lgkmcnt(0)")
    e("  s_cmp_ge_u32 s36, 6")
    e("  s_cbranch_scc1 L_prod")
    e("  s_mul_i32 s40, s37, 147456")
    e("  s_add_u32 s28, s4, s40")
    e("  s_addc_u32 s29, s5, 0")
    e("  s_mov_b32 s30, 147456")
    e("  s_mov_b32 s31, 0x00020000")
    e("  s_cmp_ge_u32 s36, 4")
    e("  s_cbranch_scc1 L_c1")
    compute_path(2)
    e("L_c1:")
    compute_path(1)
    e("L_prod:")
    e("  s_lshl_b32 s39, s38, 8")
    e("  s_add_u32 s24, s10, s39")
    e("  s_addc_u32 s25, s11, 0")
    e("  s_sub_u32 s26, 4194304, s39")
    e("  s_mov_b32 s27, 0x00020000")
    e("  s_lshl_b32 s3, s37, 5")
    e("  s_add_u32 s3, s3, s38")
    e("  s_lshl_b32 s39, s3, 18")
    e("  s_lshr_b32 s40, s3, 14")
    e("  s_add_u32 s16, s6, s39")
    e("  s_addc_u32 s17, s7, s40")
    e("  s_add_u32 s20, s8, s39")
    e("  s_addc_u32 s21, s9, s40")
    producer_path()
    e("L_attn_done:")
    e("  s_endpgm")

def desc(name, vgpr, sgpr=72):
    e(f".amdhsa_kernel {name}")
    e(f"  .amdhsa_next_free_vgpr {vgpr}")
    e(f"  .amdhsa_next_free_sgpr {sgpr}")
    e(f"  .amdhsa_accum_offset {(vgpr+3)//4*4}")
    e("  .amdhsa_group_segment_fixed_size 0")
    e("  .amdhsa_kernarg_size 64")
    e("  .amdhsa_user_sgpr_count 2")
    e("  .amdhsa_user_sgpr_kernarg_segment_ptr 1")
    e("  .amdhsa_system_sgpr_workgroup_id_x 1")
    e(".end_amdhsa_kernel")

out.append(HEADER)
gen_attn()
e('.section .rodata,"a"')
e(".p2align 6")
desc("attn_kernel", 256, 96)
txt = "\n".join(out) + "\n"
for ln in txt.split("\n"):
    m = re.search(r"buffer_.*offset:(\d+)", ln)
    if m: assert int(m.group(1)) < 4096, ln
open(sys.argv[1], "w").write(txt)
```

```python
import math, sys, struct, re

out = []
def e(s=""):
    out.append(s)

ARGS = sys.argv[2:]
STAMP = "stamp" in ARGS
NT = "" if "nont" in ARGS else " nt"

HEADER = """; Kernarg layout for this problem (64 bytes, ptrs only, base s[0:1]):
; @launch grid=(256,1,1) block=(512,1,1) lds=163840
.amdgcn_target "amdgcn-amd-amdhsa--gfx950"
.text
"""

def f2u(f):
    return struct.unpack("<I", struct.pack("<f", f))[0]

CSCALE = (128 ** -0.5) * math.log2(math.e)
PART_OFF = 16777216
STAMP_OFF = 67108864
SV = 252

def stamp():
    if not STAMP: return
    e("  s_memrealtime s[52:53]" if "rt" in ARGS else "  s_memtime s[52:53]")
    e("  s_waitcnt lgkmcnt(0)")
    e(f"  v_mov_b32 v{SV+1}, s52")
    e(f"  v_cmp_eq_u32 s[54:55], s50, v{SV+2}")
    e("  s_nop 1")
    e(f"  v_cndmask_b32 v{SV}, v{SV}, v{SV+1}, s[54:55]")
    e("  s_add_u32 s50, s50, 1")

def stamp_out():
    if not STAMP: return
    e("  s_mul_i32 s3, s2, 9")
    e("  s_add_u32 s3, s3, s36")
    e("  s_lshl_b32 s3, s3, 8")
    e(f"  s_add_u32 s3, s3, {STAMP_OFF}")
    e("  s_add_u32 s56, s12, s3")
    e("  s_addc_u32 s57, s13, 0")
    e("  s_mov_b32 s58, 256")
    e("  s_mov_b32 s59, 0x00020000")
    e(f"  v_lshlrev_b32 v{SV+1}, 2, v{SV+2}")
    e(f"  buffer_store_dword v{SV}, v{SV+1}, s[56:59], 0 offen")

def lane_setup():
    e("  v_lshrrev_b32 v1, 6, v0")
    e("  v_and_b32 v0, 63, v0")
    e("  s_nop 0")
    e("  v_readfirstlane_b32 s36, v1")
    e("  v_and_b32 v1, 15, v0")
    e("  v_lshrrev_b32 v2, 4, v0")

def tr_addr_setup(mode="x"):
    e("  v_bfe_u32 v24, v0, 2, 2")
    e("  v_and_b32 v25, 3, v0")
    e("  v_and_b32 v26, 1, v2")
    if mode == "x":
        e("  v_lshl_add_u32 v27, v2, 4, v24")
    else:
        e("  v_lshl_add_u32 v27, v26, 4, v24")
        e("  v_lshrrev_b32 v3, 1, v2")
        e("  v_lshl_add_u32 v27, v3, 3, v27")
    e("  v_lshl_add_u32 v26, v26, 2, v24")
    e("  v_lshlrev_b32 v27, 8, v27")
    e("  v_lshrrev_b32 v3, 1, v25")
    e("  v_lshl_add_u32 v27, v3, 4, v27")
    e("  v_and_b32 v3, 1, v25")
    e("  v_lshl_add_u32 v27, v3, 3, v27")
    for j in range(8):
        e(f"  v_xor_b32 v3, {j}, v26")
        e(f"  v_lshl_add_u32 v{14+j}, v3, 5, v27")

MFMA = "v_mfma_f32_16x16x32_bf16"
Qr = [28, 44]
Or = [60, 92]
Sr = [124, 140]
ONES = 156
Lr = [160, 164]
F = 168
NM = [232, 236]
Tm = [(24, 25), (6, 7)]
THR = ["s60", "s62"]
FLR = ["s61", "s63"]
def xreg(tile, ks):
    pool = list(range(28, 60, 4)) + list(range(124, 168, 4)) + list(range(200, 252, 4))
    return pool[tile * 16 + ks]

def gemm_pair(T, p, hbrows):
    WF = F
    def reads(kidx, j):
        tile, hb = kidx >> 1, kidx & 1
        for hh in range(2):
            off = tile * 16384 + (hbrows * hb + 4 * hh) * 256
            r = WF + 4 * j + 2 * hh
            e(f"  ds_read_b64_tr_b16 v[{r}:{r+1}], v{14+j} offset:{off}")
    for j in range(8):
        reads(0, j)
    for kidx in range(4):
        for j in range(8):
            if j % 2 == 0:
                e(f"  s_waitcnt lgkmcnt({12 if kidx < 3 else 12-2*j})")
            a = WF + 4 * j
            for tl in range(T):
                xr = xreg(tl, 4 * p + kidx)
                d = Or[tl] + 4 * j
                e(f"  {MFMA} v[{d}:{d+3}], v[{a}:{a+3}], v[{xr}:{xr+3}], v[{d}:{d+3}]")
            if kidx < 3:
                reads(kidx + 1, j)

def softmax_ops(tl, lab, n=16):
    S = [Sr[tl] + i for i in range(n)]
    a, b = Tm[tl]
    L = []
    if n == 16:
        L.append(f"  v_max3_f32 v{a}, v{S[0]}, v{S[1]}, v{S[2]}")
        L.append(f"  v_max3_f32 v{b}, v{S[3]}, v{S[4]}, v{S[5]}")
        L.append(f"  v_max3_f32 v{a}, v{a}, v{S[6]}, v{S[7]}")
        L.append(f"  v_max3_f32 v{b}, v{b}, v{S[8]}, v{S[9]}")
        L.append(f"  v_max3_f32 v{a}, v{a}, v{S[10]}, v{S[11]}")
        L.append(f"  v_max3_f32 v{b}, v{b}, v{S[12]}, v{S[13]}")
        L.append(f"  v_max3_f32 v{a}, v{a}, v{S[14]}, v{S[15]}")
        L.append(f"  v_max_f32 v{a}, v{a}, v{b}")
    else:
        L.append(f"  v_max3_f32 v{a}, v{S[0]}, v{S[1]}, v{S[2]}")
        L.append(f"  v_max3_f32 v{b}, v{S[3]}, v{S[4]}, v{S[5]}")
        L.append(f"  v_max3_f32 v{a}, v{a}, v{S[6]}, v{S[7]}")
        L.append(f"  v_max_f32 v{a}, v{a}, v{b}")
    L.append(f"  v_cmp_lt_f32 vcc, {THR[tl]}, v{a}\n  s_cbranch_vccnz L_slow{lab}\nL_back{lab}:")
    for i in range(n):
        L.append(f"  v_exp_f32 v{S[i]}, v{S[i]}")
    L.append("  s_nop 0")
    for i in range(n // 2):
        L.append(f"  v_cvt_pk_bf16_f32 v{S[i]}, v{S[2*i]}, v{S[2*i+1]}")
    return L

def slow_path(tl, lab, n=16):
    a, b = Tm[tl]
    e(f"L_slow{lab}:")
    e(f"  v_mov_b32 v{b}, v{a}")
    e(f"  s_nop 1")
    e(f"  v_permlane32_swap_b32 v{a}, v{b}")
    e(f"  v_max_f32 v{a}, v{a}, v{b}")
    e(f"  v_mov_b32 v{b}, v{a}")
    e(f"  s_nop 1")
    e(f"  v_permlane16_swap_b32 v{a}, v{b}")
    e(f"  v_max_f32 v{a}, v{a}, v{b}")
    e(f"  v_max_f32 v{a}, {FLR[tl]}, v{a}")
    e(f"  v_sub_f32 v{b}, 0, v{a}")
    e(f"  v_min_f32 v{b}, 0, v{b}")
    e(f"  v_exp_f32 v{b}, v{b}")
    e(f"  s_mov_b32 {THR[tl]}, 0x41000000")
    e(f"  s_mov_b32 {FLR[tl]}, 0")
    for r in list(range(NM[tl], NM[tl] + 4)) + list(range(Sr[tl], Sr[tl] + n)):
        e(f"  v_sub_f32 v{r}, v{r}, v{a}")
    for r in list(range(Or[tl], Or[tl] + 32)) + list(range(Lr[tl], Lr[tl] + 4)):
        e(f"  v_mul_f32 v{r}, v{r}, v{b}")
    e(f"  s_branch L_back{lab}")

def interleave(main, fill, start=0, per=4):
    fi = 0
    for gi, g in enumerate(main):
        for s_ in g: e(s_)
        if gi >= start:
            for _ in range(per):
                if fi < len(fill):
                    e(fill[fi]); fi += 1
    while fi < len(fill):
        e(fill[fi]); fi += 1

def compute_path(T):
    P = f"c{T}"
    H = (T == 1)
    if H:
        e("  s_mov_b32 s3, 128")
        e("  s_sub_u32 s49, s36, 4")
    else:
        e("  s_lshl_b32 s3, s36, 5")
    e("  v_add_u32 v25, s3, v1")
    e("  v_lshlrev_b32 v25, 10, v25")
    e("  v_lshl_add_u32 v4, v2, 5, v25")
    if T == 2:
        e("  v_add_u32 v5, 16384, v4")
    def xloads(c):
        for tl in range(T):
            for ks in range(4 * c, 4 * c + 4):
                r = xreg(tl, ks)
                e(f"  buffer_load_dwordx4 v[{r}:{r+3}], v{4+tl}, s[28:31], 0 offen offset:{128*(ks>>1) + 16*(ks&1)}")
    xloads(0)
    tr_addr_setup("x")
    for tl in range(T):
        for r in range(Or[tl], Or[tl] + 32):
            e(f"  v_mov_b32 v{r}, 0")
    wphys = [4, 2, 3, 4]
    prev = 0
    for p in range(4):
        stamp()
        e("  s_barrier")
        stamp()
        if p + 1 < 4:
            xloads(p + 1)
        delta = wphys[p] * 32768 - prev
        prev = wphys[p] * 32768
        e(f"  s_mov_b32 s3, {delta & 0xffffffff}")
        for j in range(8):
            e(f"  v_add_u32 v{14+j}, s3, v{14+j}")
        e(f"  s_waitcnt vmcnt({4*T*(min(3, p+1) - p)})")
        gemm_pair(T, p, 8)
    e(f"  v_mul_u32_u24 v3, {12*256}, v2")
    e(f"  v_add_u32 v3, {prev}, v3")
    if H:
        e("  s_lshl_b32 s3, s49, 13")
        e("  v_subrev_u32 v3, s3, v3")
    for j in range(8):
        e(f"  v_sub_u32 v{14+j}, v{14+j}, v3")
    e("  v_and_b32 v26, 1, v2")
    e("  v_lshrrev_b32 v27, 1, v2")
    e("  v_lshl_add_u32 v26, v26, 1, v27")
    e("  v_xor_b32 v26, v26, v1")
    for s in range(4):
        e(f"  v_xor_b32 v3, {4*s}, v26")
        e(f"  v_lshlrev_b32 v3, 4, v3")
        e(f"  v_lshl_add_u32 v{10+s}, v1, 8, v3")
        if H:
            e(f"  v_add_u32 v{10+s}, s3, v{10+s}")
    e("  s_barrier")
    NF = 8 if H else 16
    def kread(idx):
        t, s = idx >> 2, idx & 3
        a = F + 4 * idx
        return f"  ds_read_b128 v[{a}:{a+3}], v{10+s} offset:{t*4096}"
    for idx in range(NF):
        e(kread(idx))
    for tl in range(T):
        for r in range(Or[tl], Or[tl] + 32):
            e(f"  v_mul_f32 v{r}, s44, v{r}")
        for j in range(8):
            a = Or[tl] + 4 * j
            e(f"  v_cvt_pk_bf16_f32 v{Qr[tl]+2*j}, v{a}, v{a+1}")
            e(f"  v_cvt_pk_bf16_f32 v{Qr[tl]+1+2*j}, v{a+2}, v{a+3}")
    for tl in range(T):
        for r in range(Or[tl], Or[tl] + 32):
            e(f"  v_mov_b32 v{r}, 0")
    for tl in range(T):
        for s in range(4):
            e(f"  v_permlane16_swap_b32 v{Qr[tl]+4*s}, v{Qr[tl]+2+4*s}")
            e(f"  v_permlane16_swap_b32 v{Qr[tl]+1+4*s}, v{Qr[tl]+3+4*s}")
    for r in range(ONES, ONES + 4):
        e(f"  v_mov_b32 v{r}, 0x3f803f80")
    for tl in range(T):
        for r in list(range(Lr[tl], Lr[tl] + 4)) + list(range(NM[tl], NM[tl] + 4)):
            e(f"  v_mov_b32 v{r}, 0")
        e(f"  s_mov_b32 {THR[tl]}, 0xff800000")
        e(f"  s_mov_b32 {FLR[tl]}, 0xff800000")
    e("  s_mov_b32 s40, 0")
    e("  s_mov_b32 s41, 0")
    e(f"L_loop{P}:")
    stamp()
    def qk(tl, idx):
        t, s = idx >> 2, idx & 3
        r = F + 4 * idx
        d = Sr[tl] + 4 * t
        q = Qr[tl] + 4 * s
        c = f"v[{NM[tl]}:{NM[tl]+3}]" if s == 0 else f"v[{d}:{d+3}]"
        return f"  {MFMA} v[{d}:{d+3}], v[{r}:{r+3}], v[{q}:{q+3}], {c}"
    def vreads(idx):
        r = F + 4 * idx
        u, j = idx >> 3, idx & 7
        return [f"  ds_read_b64_tr_b16 v[{r+2*hh}:{r+2*hh+1}], v{14+j} offset:{16384 + u*8192 + hh*4096}" for hh in range(2)]
    def pv(tl, idx):
        u, j = idx >> 3, idx & 7
        a = F + 4 * idx
        d = Or[tl] + 4 * j
        p = Sr[tl] + 4 * u
        return f"  {MFMA} v[{d}:{d+3}], v[{a}:{a+3}], v[{p}:{p+3}], v[{d}:{d+3}]"
    def lacc(tl, u):
        p = Sr[tl] + 4 * u
        l = Lr[tl]
        return f"  {MFMA} v[{l}:{l+3}], v[{ONES}:{ONES+3}], v[{p}:{p+3}], v[{l}:{l+3}]"
    adv = ["  s_add_u32 s42, s41, 32768", "  s_cmp_ge_u32 s42, 163840", "  s_cselect_b32 s42, 0, s42", "  s_sub_u32 s3, s42, s41"]
    kadv = [f"  v_add_u32 v{r}, s3, v{r}" for r in range(10, 14)]
    vadv = [f"  v_add_u32 v{r}, s3, v{r}" for r in range(14, 22)]
    for s_ in adv: e(s_)
    if T == 2:
        for idx in range(16):
            if idx % 4 == 0: e(f"  s_waitcnt lgkmcnt({12-idx})")
            e(qk(0, idx))
        main = [[qk(1, idx)] + vreads(idx) for idx in range(16)]
        interleave(main, kadv + softmax_ops(0, P + "a"), start=1, per=3)
        e("  s_nop 1")
        main = []
        for idx in range(16):
            g = []
            if idx % 8 == 0: g.append(lacc(0, idx >> 3))
            if idx == 0: g.append("  s_waitcnt lgkmcnt(8)")
            if idx == 12: g.append("  s_waitcnt lgkmcnt(0)")
            g.append(pv(0, idx))
            main.append(g)
        interleave(main, vadv + softmax_ops(1, P + "b"), start=1, per=3)
        stamp()
        e("  s_barrier")
        stamp()
        for idx in range(16):
            if idx % 8 == 0: e(lacc(1, idx >> 3))
            e(pv(1, idx))
            e(kread(idx))
    else:
        for idx in range(8):
            if idx % 4 == 0: e(f"  s_waitcnt lgkmcnt({4+idx})")
            e(qk(0, idx))
            for s_ in vreads(idx): e(s_)
        for s_ in kadv: e(s_)
        e("  s_nop 3")
        for s_ in softmax_ops(0, P + "a", 8): e(s_)
        for s_ in vadv: e(s_)
        stamp()
        e("  s_waitcnt lgkmcnt(0)")
        e("  s_barrier")
        stamp()
        e(lacc(0, 0))
        for idx in range(8):
            e(pv(0, idx))
            e(kread(idx))
    e("  s_mov_b32 s41, s42")
    e("  s_add_u32 s40, s40, 1")
    e("  s_cmp_lt_u32 s40, 16")
    e(f"  s_cbranch_scc1 L_loop{P}")
    e("  v_lshlrev_b32 v4, 4, v0")
    e("  v_add_u32 v5, 4096, v4")
    if H:
        e("  s_cmp_eq_u32 s49, 0")
        e("  s_cbranch_scc1 L_mrg_r")
        e("  s_nop 4")
        for j in range(8):
            a = Or[0] + 4 * j
            e(f"  ds_write_b128 v{4 + (j>>2)}, v[{a}:{a+3}] offset:{1024*(j&3)}")
        e(f"  v_mov_b32 v{Lr[0]+1}, v{NM[0]}")
        e(f"  ds_write_b64 v4, v[{Lr[0]}:{Lr[0]+1}] offset:8192")
        e("  s_waitcnt lgkmcnt(0)")
        e("  s_barrier")
        e("  s_barrier")
        e("  s_barrier")
        e("  s_barrier")
        e("  s_barrier")
        stamp_out()
        e("  s_endpgm")
        e("L_mrg_r:")
        e("  s_waitcnt lgkmcnt(0)")
        e("  s_barrier")
        for j in range(8):
            a = F + 4 * j
            e(f"  ds_read_b128 v[{a}:{a+3}], v{4 + (j>>2)} offset:{1024*(j&3)}")
        e(f"  ds_read_b64 v[24:25], v4 offset:8192")
        e("  s_waitcnt lgkmcnt(0)")
        e(f"  v_min_f32 v26, v25, v{NM[0]}")
        e(f"  v_sub_f32 v27, v26, v{NM[0]}")
        e(f"  v_sub_f32 v26, v26, v25")
        e(f"  v_exp_f32 v27, v27")
        e(f"  v_exp_f32 v26, v26")
        e("  s_nop 0")
        e(f"  v_mul_f32 v{Lr[0]}, v{Lr[0]}, v27")
        e(f"  v_fmac_f32 v{Lr[0]}, v24, v26")
        for r in range(32):
            e(f"  v_mul_f32 v{Or[0]+r}, v{Or[0]+r}, v27")
            e(f"  v_fmac_f32 v{Or[0]+r}, v{F+r}, v26")
    else:
        e("  s_barrier")
    if H: e("  s_mov_b32 s45, 8")
    else: e("  s_lshl_b32 s45, s36, 1")
    e("  s_mul_i32 s40, s37, 9")
    e("  s_add_u32 s40, s40, s45")
    e("  s_lshl_b32 s41, s40, 7")
    e("  s_lshl_b32 s39, s38, 2")
    e("  s_add_u32 s41, s41, s39")
    e("  s_lshl_b32 s41, s41, 10")
    e("  s_add_u32 s32, s12, s41")
    e("  s_addc_u32 s33, s13, 0")
    e(f"  s_mov_b32 s34, {131072*(T-1) + 4096}")
    e("  s_mov_b32 s35, 0x00020000")
    e("  s_mov_b32 s46, 8192")
    e("  s_mov_b32 s47, 131072")
    e("  s_mov_b32 s48, 139264")
    for tl in range(T):
        e(f"  v_rcp_f32 v{25+tl}, v{Lr[tl]}")
    e("  s_nop 0")
    for tl in range(T):
        for r in range(Or[tl], Or[tl] + 32):
            e(f"  v_mul_f32 v{r}, v{r}, v{25+tl}")
        for j in range(8):
            a = Or[tl] + 4 * j
            e(f"  v_cvt_pk_bf16_f32 v{Qr[tl]+2*j}, v{a}, v{a+1}")
            e(f"  v_cvt_pk_bf16_f32 v{Qr[tl]+1+2*j}, v{a+2}, v{a+3}")
        e("  s_nop 1")
        for s in range(4):
            e(f"  v_permlane16_swap_b32 v{Qr[tl]+4*s}, v{Qr[tl]+2+4*s}")
            e(f"  v_permlane16_swap_b32 v{Qr[tl]+1+4*s}, v{Qr[tl]+3+4*s}")
        so = "0" if tl == 0 else "s47"
        for s in range(4):
            e(f"  buffer_store_dwordx4 v[{Qr[tl]+4*s}:{Qr[tl]+3+4*s}], v4, s[32:35], {so} offen offset:{1024*s} sc1")
    stamp()
    e("  s_lshr_b32 s42, s38, 2")
    e("  s_and_b32 s43, s38, 3")
    e("  s_lshl_b32 s41, s40, 7")
    e("  s_lshl_b32 s3, s42, 4")
    e("  s_add_u32 s41, s41, s3")
    e("  s_lshl_b32 s41, s41, 10")
    e("  s_add_u32 s28, s12, s41")
    e("  s_addc_u32 s29, s13, 0")
    e(f"  s_mov_b32 s30, {131072*(T-1) + 16384}")
    e("  s_mov_b32 s31, 0x00020000")
    tr_addr_setup("o")
    for j in range(8):
        e(f"  v_add_u32 v{14+j}, 0x8000, v{14+j}")
    for tl in range(T):
        for r in range(Or[tl], Or[tl] + 32):
            e(f"  v_mov_b32 v{r}, 0")
    e("  s_lshl_b32 s3, s37, 2")
    e("  s_add_u32 s3, s3, s43")
    e("  s_lshl_b32 s41, s42, 5")
    e("  s_add_u32 s41, s41, s3")
    e("  s_mul_i32 s41, s41, 9")
    e("  s_add_u32 s41, s41, s45")
    e("  s_lshl_b32 s41, s41, 13")
    e(f"  s_add_u32 s41, s41, {PART_OFF}")
    e("  s_add_u32 s20, s12, s41")
    e("  s_addc_u32 s21, s13, 0")
    e(f"  s_mov_b32 s22, {8192*T}")
    e("  s_mov_b32 s23, 0x00020000")
    e("  s_mul_i32 s41, s3, 9")
    e("  s_add_u32 s41, s41, s45")
    e("  s_lshl_b32 s41, s41, 3")
    e("  s_add_u32 s41, s41, s42")
    e("  s_lshl_b32 s41, s41, 10")
    e(f"  s_add_u32 s41, s41, {PART_OFF}")
    e("  s_add_u32 s24, s12, s41")
    e("  s_addc_u32 s25, s13, 0")
    e(f"  s_mov_b32 s26, {7*2359296 + 8192*(T-1) + 1024}")
    e("  s_mov_b32 s27, 0x00020000")
    e("  s_mul_i32 s41, s37, 144")
    e("  s_lshl_b32 s39, s45, 4")
    e("  s_add_u32 s41, s41, s39")
    e("  s_lshl_b32 s41, s41, 10")
    e("  s_lshl_b32 s39, s43, 8")
    e("  s_add_u32 s41, s41, s39")
    e("  s_lshl_b32 s39, s42, 5")
    e("  s_add_u32 s41, s41, s39")
    e("  s_add_u32 s16, s74, s41")
    e("  s_addc_u32 s17, s75, 0")
    e("  s_sub_u32 s18, 1179648, s41")
    e("  s_mov_b32 s19, 0x00020000")
    e("  v_lshlrev_b32 v6, 10, v1")
    e("  v_lshl_add_u32 v6, v2, 3, v6")
    e("  v_add_u32 v7, 16384, v6")
    e("  s_waitcnt vmcnt(0)")
    e("  s_barrier")
    e("  s_barrier")
    stamp()
    for c in range(4):
        for tl in range(T):
            for ks in range(4 * c, 4 * c + 4):
                r = xreg(tl, ks)
                so = ["0", "s46", "s47", "s48"][2 * tl + (ks >> 3)]
                e(f"  buffer_load_dwordx4 v[{r}:{r+3}], v{4 + ((ks>>2)&1)}, s[28:31], {so} offen offset:{1024*(ks&3)} sc1")
    for p in range(4):
        e(f"  s_waitcnt vmcnt({4*T*(3-p)})")
        if p > 0:
            for j in range(8):
                e(f"  v_add_u32 v{14+j}, 0x8000, v{14+j}")
        gemm_pair(T, p, 32)
    e("  s_nop 7")
    for tl in range(T):
        so = "0" if tl == 0 else "s46"
        for j in range(8):
            a = Or[tl] + 4 * j
            e(f"  buffer_store_dwordx4 v[{a}:{a+3}], v{4 + (j>>2)}, s[20:23], {so} offen offset:{1024*(j&3)} sc1")
    e("  s_waitcnt vmcnt(0)")
    stamp()
    e("  s_barrier")
    e("  s_barrier")
    stamp()
    for tl in range(T):
        for k2 in range(8):
            e(f"  s_mov_b32 s3, {k2*2359296 + tl*8192}")
            r = 124 + 32 * tl + 4 * k2
            e(f"  buffer_load_dwordx4 v[{r}:{r+3}], v4, s[24:27], s3 offen sc1")
    for tl in range(T):
        base = 124 + 32 * tl
        for k2 in range(1, 8):
            e(f"  s_waitcnt vmcnt({8*(T-1-tl) + 7-k2})")
            for r in range(4):
                e(f"  v_add_f32 v{base+r}, v{base+r}, v{base+4*k2+r}")
        e(f"  v_cvt_pk_bf16_f32 v{base}, v{base}, v{base+1}")
        e(f"  v_cvt_pk_bf16_f32 v{base+1}, v{base+2}, v{base+3}")
        e(f"  buffer_store_dwordx2 v[{base}:{base+1}], v{6+tl}, s[16:19], 0 offen")
    stamp()
    stamp_out()
    e("  s_endpgm")
    for tl in range(T):
        slow_path(tl, P + "ab"[tl], 8 if H else 16)

def producer_path():
    e("  s_sub_u32 s45, s36, 6")
    e("  s_lshl_b32 s46, s45, 14")
    e("  s_cmp_eq_u32 s45, 0")
    e("  s_cselect_b32 s60, s16, s20")
    e("  s_cselect_b32 s61, s17, s21")
    e("  s_mov_b32 s62, 262144")
    e("  s_mov_b32 s63, 0x00020000")
    for n in range(4):
        e(f"  v_add_u32 v24, {4*n}, v2")
        e(f"  v_add_u32 v25, {4*(n&1)}, v2")
        e(f"  v_lshlrev_b32 v25, 1, v25")
        e(f"  v_cndmask_b32 v24, v25, v24, s[48:49]")
        e(f"  v_xor_b32 v24, v24, v1")
        e(f"  v_lshlrev_b32 v24, 4, v24")
        e(f"  v_lshl_add_u32 v{4+n}, v2, 8, v24")
    for b in range(2):
        e(f"  v_add_u32 v24, {4*b}, v2")
        e(f"  v_lshlrev_b32 v24, 1, v24")
        e(f"  v_xor_b32 v24, v24, v1")
        e(f"  v_lshlrev_b32 v24, 4, v24")
        e(f"  v_lshl_add_u32 v{8+b}, v2, 13, v24")
        e(f"  v_lshl_add_u32 v{10+b}, v2, 10, v24")
    e("  s_lshl_b32 s47, s45, 19")
    def issue_W(p, phys):
        e(f"  s_add_u32 s64, s46, {phys*32768}")
        e(f"  s_add_u32 s65, s47, {2*p*524288}")
        for n in range(16):
            e(f"  s_mov_b32 m0, s64")
            e(f"  s_add_u32 s64, s64, 1024")
            e(f"  buffer_load_dwordx4 v{8 + ((n>>2)&1)}, s[24:27], s65 offen lds")
            if n < 15:
                e(f"  s_add_u32 s65, s65, 32768")
    def issue_KV(slot, soff):
        e(f"  s_add_u32 s64, s46, {slot}")
        e(f"  s_mov_b32 s65, {soff}")
        for q in range(4):
            e(f"  s_mov_b32 m0, s64")
            e(f"  s_add_u32 s64, s64, 4096")
            for n in range(4):
                e(f"  buffer_load_dwordx4 v{4+n}, s[60:63], s65 offen offset:{1024*n}{NT} lds")
            if q < 3:
                e(f"  s_add_u32 s65, s65, 4096")
    issue_W(0, 4)
    issue_W(1, 2)
    stamp()
    e("  s_waitcnt vmcnt(16)")
    e("  s_barrier")
    stamp()
    issue_KV(0, 0)
    issue_W(2, 3)
    stamp()
    e("  s_waitcnt vmcnt(32)")
    e("  s_barrier")
    stamp()
    issue_W(3, 4)
    issue_KV(32768, 16384)
    stamp()
    e("  s_waitcnt vmcnt(32)")
    e("  s_barrier")
    stamp()
    issue_KV(2*32768, 2*16384)
    stamp()
    e("  s_waitcnt vmcnt(32)")
    e("  s_barrier")
    stamp()
    issue_KV(3*32768, 3*16384)
    e("  s_barrier")
    issue_KV(4*32768, 4*16384)
    e("  s_mov_b32 s40, 0")
    e("  s_mov_b32 s41, 0")
    e(f"  s_mov_b32 s43, {5*16384}")
    e("  s_lshr_b32 s66, s38, 2")
    e("  s_and_b32 s67, s38, 3")
    e("  s_lshl_b32 s3, s66, 19")
    e("  s_lshl_b32 s64, s67, 8")
    e("  s_add_u32 s3, s3, s64")
    e("  s_add_u32 s80, s72, s3")
    e("  s_addc_u32 s81, s73, 0")
    e("  s_sub_u32 s82, 4194304, s3")
    e("  s_mov_b32 s83, 0x00020000")
    e("L_loopP:")
    stamp()
    e("  s_waitcnt vmcnt(48)")
    stamp()
    e("  s_barrier")
    stamp()
    issue_KV("s41", "s43")
    e("  s_add_u32 s41, s41, 32768")
    e("  s_cmp_ge_u32 s41, 163840")
    e("  s_cselect_b32 s41, 0, s41")
    e("  s_add_u32 s43, s43, 16384")
    e("  s_add_u32 s40, s40, 1")
    e("  s_cmp_lt_u32 s40, 11")
    e("  s_cbranch_scc1 L_loopP")
    e("  s_lshl_b32 s43, s45, 16")
    e("  s_mov_b32 s40, 0")
    e("L_loopW:")
    e("  s_waitcnt vmcnt(48)")
    e("  s_barrier")
    e("  s_add_u32 s64, s46, s41")
    e("  s_mov_b32 s65, s43")
    for n in range(16):
        e(f"  s_mov_b32 m0, s64")
        e(f"  s_add_u32 s64, s64, 1024")
        e(f"  buffer_load_dwordx4 v{10 + ((n>>2)&1)}, s[80:83], s65 offen lds")
        if n < 15:
            e(f"  s_add_u32 s65, s65, 4096")
    e("  s_add_u32 s41, s41, 32768")
    e("  s_add_u32 s43, s43, 131072")
    e("  s_add_u32 s40, s40, 1")
    e("  s_cmp_lt_u32 s40, 4")
    e("  s_cbranch_scc1 L_loopW")
    e("  s_barrier")
    e("  s_mov_b32 s84, s76")
    e("  s_mov_b32 s85, s77")
    e("  s_mov_b32 s86, 256")
    e("  s_mov_b32 s87, 0x00020000")
    e("  s_lshl_b32 s3, s37, 3")
    e("  s_add_u32 s3, s3, s66")
    e("  s_lshl_b32 s3, s3, 2")
    e("  v_mov_b32 v21, s3")
    e("  s_lshl_b32 s3, s37, 2")
    e("  s_add_u32 s3, s3, s67")
    e("  s_lshl_b32 s3, s3, 2")
    e("  v_mov_b32 v23, s3")
    e("  v_mov_b32 v20, 1")
    e("  v_mov_b32 v22, 0x10000")
    e("  s_barrier")
    e("  s_waitcnt vmcnt(0)")
    e("  s_barrier")
    def sync(lab, vdata, vaddr, shift, target):
        e("  s_cmp_lg_u32 s36, 6")
        e(f"  s_cbranch_scc1 L_sd{lab}")
        e("  s_mov_b64 exec, 1")
        e(f"  buffer_atomic_add v{vdata}, v{vaddr}, s[84:87], 0 offen sc1")
        e("  s_mov_b32 s40, 0")
        e(f"L_sp{lab}:")
        e(f"  buffer_load_dword v24, v{vaddr}, s[84:87], 0 offen sc1")
        e("  s_waitcnt vmcnt(0)")
        e("  v_readfirstlane_b32 s3, v24")
        if shift: e(f"  s_lshr_b32 s3, s3, {shift}")
        else: e("  s_and_b32 s3, s3, 0xffff")
        e(f"  s_cmp_ge_u32 s3, {target}")
        e(f"  s_cbranch_scc1 L_sx{lab}")
        e("  s_sleep 1")
        e("  s_add_u32 s40, s40, 1")
        e("  s_cmp_lt_u32 s40, 0x100000")
        e(f"  s_cbranch_scc1 L_sp{lab}")
        e(f"L_sx{lab}:")
        e("  s_mov_b64 exec, -1")
        e(f"L_sd{lab}:")
    sync("1", 20, 21, 0, 4)
    e("  s_barrier")
    e("  s_barrier")
    sync("2", 22, 23, 16, 8)
    e("  s_barrier")
    stamp()
    stamp_out()
    e("  s_endpgm")

def gen_attn():
    e(".globl standalone__gqa_block_cached__near_ridge_kernel")
    e(".p2align 8")
    e(".type standalone__gqa_block_cached__near_ridge_kernel,@function")
    e("standalone__gqa_block_cached__near_ridge_kernel:")
    e("  s_cmp_ge_u32 s2, 256")
    e("  s_cbranch_scc1 L_attn_done")
    e("  s_load_dwordx8 s[4:11], s[0:1], 0")
    e("  s_load_dwordx2 s[12:13], s[0:1], 56")
    e("  s_load_dwordx8 s[72:79], s[0:1], 32")
    if STAMP:
        e("  s_mov_b32 s50, 0")
        e(f"  v_mov_b32 v{SV}, 0")
        e(f"  v_and_b32 v{SV+2}, 63, v0")
        stamp()
    lane_setup()
    e("  s_and_b32 s3, s2, 7")
    e("  s_lshr_b32 s37, s2, 3")
    e("  s_and_b32 s38, s37, 3")
    e("  s_lshl_b32 s3, s3, 2")
    e("  s_add_u32 s38, s38, s3")
    e("  s_lshr_b32 s37, s37, 2")
    e(f"  s_mov_b32 s44, 0x{f2u(CSCALE):08x}")
    e("  s_cmp_eq_u32 s36, 6")
    e("  s_cselect_b64 s[48:49], -1, 0")
    e("  s_waitcnt lgkmcnt(0)")
    e("  s_cmp_ge_u32 s36, 6")
    e("  s_cbranch_scc1 L_prod")
    e("  s_mul_i32 s40, s37, 147456")
    e("  s_add_u32 s28, s4, s40")
    e("  s_addc_u32 s29, s5, 0")
    e("  s_mov_b32 s30, 147456")
    e("  s_mov_b32 s31, 0x00020000")
    e("  s_cmp_ge_u32 s36, 4")
    e("  s_cbranch_scc1 L_c1")
    compute_path(2)
    e("L_c1:")
    compute_path(1)
    e("L_prod:")
    e("  s_lshl_b32 s39, s38, 8")
    e("  s_add_u32 s24, s10, s39")
    e("  s_addc_u32 s25, s11, 0")
    e("  s_sub_u32 s26, 4194304, s39")
    e("  s_mov_b32 s27, 0x00020000")
    e("  s_lshl_b32 s3, s37, 5")
    e("  s_add_u32 s3, s3, s38")
    e("  s_lshl_b32 s39, s3, 18")
    e("  s_lshr_b32 s40, s3, 14")
    e("  s_add_u32 s16, s6, s39")
    e("  s_addc_u32 s17, s7, s40")
    e("  s_add_u32 s20, s8, s39")
    e("  s_addc_u32 s21, s9, s40")
    producer_path()
    e("L_attn_done:")
    e("  s_endpgm")

def desc(name, vgpr, sgpr=72):
    e(f".amdhsa_kernel {name}")
    e(f"  .amdhsa_next_free_vgpr {vgpr}")
    e(f"  .amdhsa_next_free_sgpr {sgpr}")
    e(f"  .amdhsa_accum_offset {(vgpr+3)//4*4}")
    e("  .amdhsa_group_segment_fixed_size 0")
    e("  .amdhsa_kernarg_size 64")
    e("  .amdhsa_user_sgpr_count 2")
    e("  .amdhsa_user_sgpr_kernarg_segment_ptr 1")
    e("  .amdhsa_system_sgpr_workgroup_id_x 1")
    e(".end_amdhsa_kernel")

out.append(HEADER)
gen_attn()
e('.section .rodata,"a"')
e(".p2align 6")
desc("standalone__gqa_block_cached__near_ridge_kernel", 256, 96)
txt = "\n".join(out) + "\n"
for ln in txt.split("\n"):
    m = re.search(r"buffer_.*offset:(\d+)", ln)
    if m: assert int(m.group(1)) < 4096, ln
open(sys.argv[1], "w").write(txt)
```

```python
import math, sys, struct, re

out = []
def e(s=""):
    out.append(s)

ARGS = sys.argv[2:]
STAMP = "stamp" in ARGS
NT = "" if "nont" in ARGS else " nt"

HEADER = """; Kernarg layout for this problem (64 bytes, ptrs only, base s[0:1]):
; @launch grid=(256,1,1) block=(512,1,1) lds=163840
.amdgcn_target "amdgcn-amd-amdhsa--gfx950"
.text
"""

def f2u(f):
    return struct.unpack("<I", struct.pack("<f", f))[0]

CSCALE = (128 ** -0.5) * math.log2(math.e)
PART_OFF = 16777216
STAMP_OFF = 67108864
FLAG_OFF = 50331648
SV = 252

def stamp():
    if not STAMP: return
    e("  s_memrealtime s[52:53]" if "rt" in ARGS else "  s_memtime s[52:53]")
    e("  s_waitcnt lgkmcnt(0)")
    e(f"  v_mov_b32 v{SV+1}, s52")
    e(f"  v_cmp_eq_u32 s[54:55], s50, v{SV+2}")
    e("  s_nop 1")
    e(f"  v_cndmask_b32 v{SV}, v{SV}, v{SV+1}, s[54:55]")
    e("  s_add_u32 s50, s50, 1")

def stamp_out():
    if not STAMP: return
    e("  s_mul_i32 s3, s2, 9")
    e("  s_add_u32 s3, s3, s36")
    e("  s_lshl_b32 s3, s3, 8")
    e(f"  s_add_u32 s3, s3, {STAMP_OFF}")
    e("  s_add_u32 s56, s12, s3")
    e("  s_addc_u32 s57, s13, 0")
    e("  s_mov_b32 s58, 256")
    e("  s_mov_b32 s59, 0x00020000")
    e(f"  v_lshlrev_b32 v{SV+1}, 2, v{SV+2}")
    e(f"  buffer_store_dword v{SV}, v{SV+1}, s[56:59], 0 offen")

def lane_setup():
    e("  v_lshrrev_b32 v1, 6, v0")
    e("  v_and_b32 v0, 63, v0")
    e("  s_nop 0")
    e("  v_readfirstlane_b32 s36, v1")
    e("  v_and_b32 v1, 15, v0")
    e("  v_lshrrev_b32 v2, 4, v0")

def tr_addr_setup(mode="x"):
    e("  v_bfe_u32 v24, v0, 2, 2")
    e("  v_and_b32 v25, 3, v0")
    e("  v_and_b32 v26, 1, v2")
    if mode == "x":
        e("  v_lshl_add_u32 v27, v2, 4, v24")
    else:
        e("  v_lshl_add_u32 v27, v26, 4, v24")
        e("  v_lshrrev_b32 v3, 1, v2")
        e("  v_lshl_add_u32 v27, v3, 3, v27")
    e("  v_lshl_add_u32 v26, v26, 2, v24")
    e("  v_lshlrev_b32 v27, 8, v27")
    e("  v_lshrrev_b32 v3, 1, v25")
    e("  v_lshl_add_u32 v27, v3, 4, v27")
    e("  v_and_b32 v3, 1, v25")
    e("  v_lshl_add_u32 v27, v3, 3, v27")
    for j in range(8):
        e(f"  v_xor_b32 v3, {j}, v26")
        e(f"  v_lshl_add_u32 v{14+j}, v3, 5, v27")

MFMA = "v_mfma_f32_16x16x32_bf16"
Qr = [28, 44]
Or = [60, 92]
Sr = [124, 140]
ONES = 156
Lr = [160, 164]
F = 168
NM = [232, 236]
Tm = [(24, 25), (6, 7)]
THR = ["s60", "s62"]
FLR = ["s61", "s63"]
def xreg(tile, ks):
    pool = list(range(28, 60, 4)) + list(range(124, 168, 4)) + list(range(200, 252, 4))
    return pool[tile * 16 + ks]

def gemm_pair(T, p, hbrows, xfn=None):
    WF = F
    if xfn is None: xfn = lambda tl, kidx: xreg(tl, 4 * p + kidx)
    def reads(kidx, j):
        tile, hb = kidx >> 1, kidx & 1
        for hh in range(2):
            off = tile * 16384 + (hbrows * hb + 4 * hh) * 256
            r = WF + 4 * j + 2 * hh
            e(f"  ds_read_b64_tr_b16 v[{r}:{r+1}], v{14+j} offset:{off}")
    for j in range(8):
        reads(0, j)
    for kidx in range(4):
        for j in range(8):
            if j % 2 == 0:
                e(f"  s_waitcnt lgkmcnt({12 if kidx < 3 else 12-2*j})")
            a = WF + 4 * j
            for tl in range(T):
                xr = xfn(tl, kidx)
                d = Or[tl] + 4 * j
                e(f"  {MFMA} v[{d}:{d+3}], v[{a}:{a+3}], v[{xr}:{xr+3}], v[{d}:{d+3}]")
            if kidx < 3:
                reads(kidx + 1, j)

def softmax_ops(tl, lab, n=16):
    S = [Sr[tl] + i for i in range(n)]
    a, b = Tm[tl]
    L = []
    if n == 16:
        L.append(f"  v_max3_f32 v{a}, v{S[0]}, v{S[1]}, v{S[2]}")
        L.append(f"  v_max3_f32 v{b}, v{S[3]}, v{S[4]}, v{S[5]}")
        L.append(f"  v_max3_f32 v{a}, v{a}, v{S[6]}, v{S[7]}")
        L.append(f"  v_max3_f32 v{b}, v{b}, v{S[8]}, v{S[9]}")
        L.append(f"  v_max3_f32 v{a}, v{a}, v{S[10]}, v{S[11]}")
        L.append(f"  v_max3_f32 v{b}, v{b}, v{S[12]}, v{S[13]}")
        L.append(f"  v_max3_f32 v{a}, v{a}, v{S[14]}, v{S[15]}")
        L.append(f"  v_max_f32 v{a}, v{a}, v{b}")
    else:
        L.append(f"  v_max3_f32 v{a}, v{S[0]}, v{S[1]}, v{S[2]}")
        L.append(f"  v_max3_f32 v{b}, v{S[3]}, v{S[4]}, v{S[5]}")
        L.append(f"  v_max3_f32 v{a}, v{a}, v{S[6]}, v{S[7]}")
        L.append(f"  v_max_f32 v{a}, v{a}, v{b}")
    L.append(f"  v_cmp_lt_f32 vcc, {THR[tl]}, v{a}\n  s_cbranch_vccnz L_slow{lab}\nL_back{lab}:")
    for i in range(n):
        L.append(f"  v_exp_f32 v{S[i]}, v{S[i]}")
    L.append("  s_nop 0")
    for i in range(n // 2):
        L.append(f"  v_cvt_pk_bf16_f32 v{S[i]}, v{S[2*i]}, v{S[2*i+1]}")
    return L

def slow_path(tl, lab, n=16):
    a, b = Tm[tl]
    e(f"L_slow{lab}:")
    e(f"  v_mov_b32 v{b}, v{a}")
    e(f"  s_nop 1")
    e(f"  v_permlane32_swap_b32 v{a}, v{b}")
    e(f"  v_max_f32 v{a}, v{a}, v{b}")
    e(f"  v_mov_b32 v{b}, v{a}")
    e(f"  s_nop 1")
    e(f"  v_permlane16_swap_b32 v{a}, v{b}")
    e(f"  v_max_f32 v{a}, v{a}, v{b}")
    e(f"  v_max_f32 v{a}, {FLR[tl]}, v{a}")
    e(f"  v_sub_f32 v{b}, 0, v{a}")
    e(f"  v_min_f32 v{b}, 0, v{b}")
    e(f"  v_exp_f32 v{b}, v{b}")
    e(f"  s_mov_b32 {THR[tl]}, 0x41000000")
    e(f"  s_mov_b32 {FLR[tl]}, 0")
    for r in list(range(NM[tl], NM[tl] + 4)) + list(range(Sr[tl], Sr[tl] + n)):
        e(f"  v_sub_f32 v{r}, v{r}, v{a}")
    for r in list(range(Or[tl], Or[tl] + 32)) + list(range(Lr[tl], Lr[tl] + 4)):
        e(f"  v_mul_f32 v{r}, v{r}, v{b}")
    e(f"  s_branch L_back{lab}")

def interleave(main, fill, start=0, per=4):
    fi = 0
    for gi, g in enumerate(main):
        for s_ in g: e(s_)
        if gi >= start:
            for _ in range(per):
                if fi < len(fill):
                    e(fill[fi]); fi += 1
    while fi < len(fill):
        e(fill[fi]); fi += 1

def compute_path(T):
    P = f"c{T}"
    H = (T == 1)
    if H:
        e("  s_mov_b32 s3, 128")
        e("  s_sub_u32 s49, s36, 4")
    else:
        e("  s_lshl_b32 s3, s36, 5")
    e("  v_add_u32 v25, s3, v1")
    e("  v_lshlrev_b32 v25, 10, v25")
    e("  v_lshl_add_u32 v4, v2, 5, v25")
    if T == 2:
        e("  v_add_u32 v5, 16384, v4")
    def xloads(c):
        for tl in range(T):
            for ks in range(4 * c, 4 * c + 4):
                r = xreg(tl, ks)
                e(f"  buffer_load_dwordx4 v[{r}:{r+3}], v{4+tl}, s[28:31], 0 offen offset:{128*(ks>>1) + 16*(ks&1)}")
    xloads(0)
    tr_addr_setup("x")
    for tl in range(T):
        for r in range(Or[tl], Or[tl] + 32):
            e(f"  v_mov_b32 v{r}, 0")
    wphys = [4, 2, 3, 4]
    prev = 0
    for p in range(4):
        stamp()
        e("  s_barrier")
        stamp()
        if p + 1 < 4:
            xloads(p + 1)
        delta = wphys[p] * 32768 - prev
        prev = wphys[p] * 32768
        e(f"  s_mov_b32 s3, {delta & 0xffffffff}")
        for j in range(8):
            e(f"  v_add_u32 v{14+j}, s3, v{14+j}")
        e(f"  s_waitcnt vmcnt({4*T*(min(3, p+1) - p)})")
        gemm_pair(T, p, 8)
    e(f"  v_mul_u32_u24 v3, {12*256}, v2")
    e(f"  v_add_u32 v3, {prev}, v3")
    if H:
        e("  s_lshl_b32 s3, s49, 13")
        e("  v_subrev_u32 v3, s3, v3")
    for j in range(8):
        e(f"  v_sub_u32 v{14+j}, v{14+j}, v3")
    e("  v_and_b32 v26, 1, v2")
    e("  v_lshrrev_b32 v27, 1, v2")
    e("  v_lshl_add_u32 v26, v26, 1, v27")
    e("  v_xor_b32 v26, v26, v1")
    for s in range(4):
        e(f"  v_xor_b32 v3, {4*s}, v26")
        e(f"  v_lshlrev_b32 v3, 4, v3")
        e(f"  v_lshl_add_u32 v{10+s}, v1, 8, v3")
        if H:
            e(f"  v_add_u32 v{10+s}, s3, v{10+s}")
    e("  s_barrier")
    NF = 8 if H else 16
    def kread(idx):
        t, s = idx >> 2, idx & 3
        a = F + 4 * idx
        return f"  ds_read_b128 v[{a}:{a+3}], v{10+s} offset:{t*4096}"
    for idx in range(NF):
        e(kread(idx))
    for tl in range(T):
        for r in range(Or[tl], Or[tl] + 32):
            e(f"  v_mul_f32 v{r}, s44, v{r}")
        for j in range(8):
            a = Or[tl] + 4 * j
            e(f"  v_cvt_pk_bf16_f32 v{Qr[tl]+2*j}, v{a}, v{a+1}")
            e(f"  v_cvt_pk_bf16_f32 v{Qr[tl]+1+2*j}, v{a+2}, v{a+3}")
    for tl in range(T):
        for r in range(Or[tl], Or[tl] + 32):
            e(f"  v_mov_b32 v{r}, 0")
    for tl in range(T):
        for s in range(4):
            e(f"  v_permlane16_swap_b32 v{Qr[tl]+4*s}, v{Qr[tl]+2+4*s}")
            e(f"  v_permlane16_swap_b32 v{Qr[tl]+1+4*s}, v{Qr[tl]+3+4*s}")
    for r in range(ONES, ONES + 4):
        e(f"  v_mov_b32 v{r}, 0x3f803f80")
    for tl in range(T):
        for r in list(range(Lr[tl], Lr[tl] + 4)) + list(range(NM[tl], NM[tl] + 4)):
            e(f"  v_mov_b32 v{r}, 0")
        e(f"  s_mov_b32 {THR[tl]}, 0xff800000")
        e(f"  s_mov_b32 {FLR[tl]}, 0xff800000")
    e("  s_mov_b32 s40, 0")
    e("  s_mov_b32 s41, 0")
    e(f"L_loop{P}:")
    stamp()
    def qk(tl, idx):
        t, s = idx >> 2, idx & 3
        r = F + 4 * idx
        d = Sr[tl] + 4 * t
        q = Qr[tl] + 4 * s
        c = f"v[{NM[tl]}:{NM[tl]+3}]" if s == 0 else f"v[{d}:{d+3}]"
        return f"  {MFMA} v[{d}:{d+3}], v[{r}:{r+3}], v[{q}:{q+3}], {c}"
    def vreads(idx):
        r = F + 4 * idx
        u, j = idx >> 3, idx & 7
        return [f"  ds_read_b64_tr_b16 v[{r+2*hh}:{r+2*hh+1}], v{14+j} offset:{16384 + u*8192 + hh*4096}" for hh in range(2)]
    def pv(tl, idx):
        u, j = idx >> 3, idx & 7
        a = F + 4 * idx
        d = Or[tl] + 4 * j
        p = Sr[tl] + 4 * u
        return f"  {MFMA} v[{d}:{d+3}], v[{a}:{a+3}], v[{p}:{p+3}], v[{d}:{d+3}]"
    def lacc(tl, u):
        p = Sr[tl] + 4 * u
        l = Lr[tl]
        return f"  {MFMA} v[{l}:{l+3}], v[{ONES}:{ONES+3}], v[{p}:{p+3}], v[{l}:{l+3}]"
    adv = ["  s_add_u32 s42, s41, 32768", "  s_cmp_ge_u32 s42, 163840", "  s_cselect_b32 s42, 0, s42", "  s_sub_u32 s3, s42, s41"]
    kadv = [f"  v_add_u32 v{r}, s3, v{r}" for r in range(10, 14)]
    vadv = [f"  v_add_u32 v{r}, s3, v{r}" for r in range(14, 22)]
    for s_ in adv: e(s_)
    if T == 2:
        for idx in range(16):
            if idx % 4 == 0: e(f"  s_waitcnt lgkmcnt({12-idx})")
            e(qk(0, idx))
        main = [[qk(1, idx)] + vreads(idx) for idx in range(16)]
        interleave(main, kadv + softmax_ops(0, P + "a"), start=1, per=3)
        e("  s_nop 1")
        main = []
        for idx in range(16):
            g = []
            if idx % 8 == 0: g.append(lacc(0, idx >> 3))
            if idx == 0: g.append("  s_waitcnt lgkmcnt(8)")
            if idx == 12: g.append("  s_waitcnt lgkmcnt(0)")
            g.append(pv(0, idx))
            main.append(g)
        interleave(main, vadv + softmax_ops(1, P + "b"), start=1, per=3)
        stamp()
        e("  s_barrier")
        stamp()
        for idx in range(16):
            if idx % 8 == 0: e(lacc(1, idx >> 3))
            e(pv(1, idx))
            e(kread(idx))
    else:
        for idx in range(8):
            if idx % 4 == 0: e(f"  s_waitcnt lgkmcnt({4+idx})")
            e(qk(0, idx))
            for s_ in vreads(idx): e(s_)
        for s_ in kadv: e(s_)
        e("  s_nop 3")
        for s_ in softmax_ops(0, P + "a", 8): e(s_)
        for s_ in vadv: e(s_)
        stamp()
        e("  s_waitcnt lgkmcnt(0)")
        e("  s_barrier")
        stamp()
        e(lacc(0, 0))
        for idx in range(8):
            e(pv(0, idx))
            e(kread(idx))
    e("  s_mov_b32 s41, s42")
    e("  s_add_u32 s40, s40, 1")
    e("  s_cmp_lt_u32 s40, 16")
    e(f"  s_cbranch_scc1 L_loop{P}")
    e("  v_lshlrev_b32 v4, 4, v0")
    e("  v_add_u32 v5, 4096, v4")
    if H:
        e("  s_cmp_eq_u32 s49, 0")
        e("  s_cbranch_scc1 L_mrg_r")
        e("  s_nop 4")
        for j in range(8):
            a = Or[0] + 4 * j
            e(f"  ds_write_b128 v{4 + (j>>2)}, v[{a}:{a+3}] offset:{1024*(j&3)}")
        e(f"  v_mov_b32 v{Lr[0]+1}, v{NM[0]}")
        e(f"  ds_write_b64 v4, v[{Lr[0]}:{Lr[0]+1}] offset:8192")
        e("  s_waitcnt lgkmcnt(0)")
        e("  s_barrier")
        e("  s_barrier")
        e("  s_barrier")
        e("  s_barrier")
        e("  s_barrier")
        stamp_out()
        e("  s_endpgm")
        e("L_mrg_r:")
        e("  s_waitcnt lgkmcnt(0)")
        e("  s_barrier")
        for j in range(8):
            a = F + 4 * j
            e(f"  ds_read_b128 v[{a}:{a+3}], v{4 + (j>>2)} offset:{1024*(j&3)}")
        e(f"  ds_read_b64 v[24:25], v4 offset:8192")
        e("  s_waitcnt lgkmcnt(0)")
        e(f"  v_min_f32 v26, v25, v{NM[0]}")
        e(f"  v_sub_f32 v27, v26, v{NM[0]}")
        e(f"  v_sub_f32 v26, v26, v25")
        e(f"  v_exp_f32 v27, v27")
        e(f"  v_exp_f32 v26, v26")
        e("  s_nop 0")
        e(f"  v_mul_f32 v{Lr[0]}, v{Lr[0]}, v27")
        e(f"  v_fmac_f32 v{Lr[0]}, v24, v26")
        for r in range(32):
            e(f"  v_mul_f32 v{Or[0]+r}, v{Or[0]+r}, v27")
            e(f"  v_fmac_f32 v{Or[0]+r}, v{F+r}, v26")
    else:
        e("  s_barrier")
    if H: e("  s_mov_b32 s45, 8")
    else: e("  s_lshl_b32 s45, s36, 1")
    e("  s_mul_i32 s40, s37, 9")
    e("  s_add_u32 s40, s40, s45")
    e("  s_lshl_b32 s41, s40, 7")
    e("  s_lshl_b32 s39, s38, 2")
    e("  s_add_u32 s41, s41, s39")
    e("  s_lshl_b32 s41, s41, 10")
    e("  s_add_u32 s32, s12, s41")
    e("  s_addc_u32 s33, s13, 0")
    e(f"  s_mov_b32 s34, {131072*(T-1) + 4096}")
    e("  s_mov_b32 s35, 0x00020000")
    e("  s_mov_b32 s46, 8192")
    e("  s_mov_b32 s47, 131072")
    e("  s_mov_b32 s48, 139264")
    for tl in range(T):
        e(f"  v_rcp_f32 v{25+tl}, v{Lr[tl]}")
    e("  s_nop 0")
    for tl in range(T):
        for r in range(Or[tl], Or[tl] + 32):
            e(f"  v_mul_f32 v{r}, v{r}, v{25+tl}")
        for j in range(8):
            a = Or[tl] + 4 * j
            e(f"  v_cvt_pk_bf16_f32 v{Qr[tl]+2*j}, v{a}, v{a+1}")
            e(f"  v_cvt_pk_bf16_f32 v{Qr[tl]+1+2*j}, v{a+2}, v{a+3}")
        e("  s_nop 1")
        for s in range(4):
            e(f"  v_permlane16_swap_b32 v{Qr[tl]+4*s}, v{Qr[tl]+2+4*s}")
            e(f"  v_permlane16_swap_b32 v{Qr[tl]+1+4*s}, v{Qr[tl]+3+4*s}")
        so = "0" if tl == 0 else "s47"
        for s in range(4):
            e(f"  buffer_store_dwordx4 v[{Qr[tl]+4*s}:{Qr[tl]+3+4*s}], v4, s[32:35], {so} offen offset:{1024*s} sc1")
    stamp()
    e("  s_lshr_b32 s42, s38, 2")
    e("  s_and_b32 s43, s38, 3")
    e("  s_lshl_b32 s41, s40, 7")
    e("  s_lshl_b32 s3, s42, 4")
    e("  s_add_u32 s41, s41, s3")
    e("  s_lshl_b32 s41, s41, 10")
    e("  s_add_u32 s28, s12, s41")
    e("  s_addc_u32 s29, s13, 0")
    e(f"  s_mov_b32 s30, {131072*(T-1) + 16384}")
    e("  s_mov_b32 s31, 0x00020000")
    tr_addr_setup("o")
    e("  s_add_u32 s3, s43, 1")
    e("  s_lshl_b32 s3, s3, 15")
    for j in range(8):
        e(f"  v_add_u32 v{14+j}, s3, v{14+j}")
    for tl in range(T):
        for r in range(Or[tl], Or[tl] + 32):
            e(f"  v_mov_b32 v{r}, 0")
    e("  s_lshl_b32 s3, s37, 2")
    e("  s_add_u32 s3, s3, s43")
    e("  s_lshl_b32 s41, s42, 5")
    e("  s_add_u32 s41, s41, s3")
    e("  s_mul_i32 s41, s41, 9")
    e("  s_add_u32 s41, s41, s45")
    e("  s_lshl_b32 s41, s41, 13")
    e(f"  s_add_u32 s41, s41, {PART_OFF}")
    e("  s_add_u32 s20, s12, s41")
    e("  s_addc_u32 s21, s13, 0")
    e(f"  s_mov_b32 s22, {8192*T}")
    e("  s_mov_b32 s23, 0x00020000")
    e("  s_mul_i32 s41, s3, 9")
    e("  s_add_u32 s41, s41, s45")
    e("  s_lshl_b32 s41, s41, 3")
    e("  s_add_u32 s41, s41, s42")
    e("  s_lshl_b32 s41, s41, 10")
    e(f"  s_add_u32 s41, s41, {PART_OFF}")
    e("  s_add_u32 s24, s12, s41")
    e("  s_addc_u32 s25, s13, 0")
    e(f"  s_mov_b32 s26, {7*2359296 + 8192*(T-1) + 1024}")
    e("  s_mov_b32 s27, 0x00020000")
    e("  s_mul_i32 s41, s37, 144")
    e("  s_lshl_b32 s39, s45, 4")
    e("  s_add_u32 s41, s41, s39")
    e("  s_lshl_b32 s41, s41, 10")
    e("  s_lshl_b32 s39, s43, 8")
    e("  s_add_u32 s41, s41, s39")
    e("  s_lshl_b32 s39, s42, 5")
    e("  s_add_u32 s41, s41, s39")
    e("  s_add_u32 s16, s74, s41")
    e("  s_addc_u32 s17, s75, 0")
    e("  s_sub_u32 s18, 1179648, s41")
    e("  s_mov_b32 s19, 0x00020000")
    e("  v_lshlrev_b32 v6, 10, v1")
    e("  v_lshl_add_u32 v6, v2, 3, v6")
    e("  v_add_u32 v7, 16384, v6")
    e("  s_waitcnt vmcnt(0)")
    e("  s_barrier")
    gemm_pair(T, 0, 32, lambda tl, kidx: Qr[tl] + 4 * kidx)
    e("  s_barrier")
    stamp()
    for q in range(3):
        e(f"  s_add_u32 s3, s43, {1+q}")
        e(f"  s_and_b32 s3, s3, 3")
        e(f"  s_lshl_b32 s{64+q}, s3, 12")
        e(f"  s_add_u32 s{68+q}, s{64+q}, 131072")
    for q in range(3):
        for tl in range(T):
            for kk in range(4):
                r = xreg(tl, 4 * (q + 1) + kk)
                so = f"s{64+q}" if tl == 0 else f"s{68+q}"
                e(f"  buffer_load_dwordx4 v[{r}:{r+3}], v4, s[28:31], {so} offen offset:{1024*kk} sc1")
    for q in range(3):
        e(f"  s_add_u32 s3, s43, {1+q}")
        e(f"  s_and_b32 s3, s3, 3")
        e(f"  s_cmp_eq_u32 s3, 0")
        e(f"  s_mov_b32 s39, 0x8000")
        e(f"  s_cselect_b32 s3, 0xfffe8000, s39")
        for j in range(8):
            e(f"  v_add_u32 v{14+j}, s3, v{14+j}")
        e(f"  s_waitcnt vmcnt({4*T*(2-q)})")
        gemm_pair(T, q + 1, 32)
    e("  s_nop 7")
    for tl in range(T):
        so = "0" if tl == 0 else "s46"
        for j in range(8):
            a = Or[tl] + 4 * j
            e(f"  buffer_store_dwordx4 v[{a}:{a+3}], v{4 + (j>>2)}, s[20:23], {so} offen offset:{1024*(j&3)} sc1")
    e("  s_waitcnt vmcnt(0)")
    stamp()
    e("  s_barrier")
    e("  s_barrier")
    stamp()
    for tl in range(T):
        for k2 in range(8):
            e(f"  s_mov_b32 s3, {k2*2359296 + tl*8192}")
            r = 124 + 32 * tl + 4 * k2
            e(f"  buffer_load_dwordx4 v[{r}:{r+3}], v4, s[24:27], s3 offen sc1")
    for tl in range(T):
        base = 124 + 32 * tl
        for k2 in range(1, 8):
            e(f"  s_waitcnt vmcnt({8*(T-1-tl) + 7-k2})")
            for r in range(4):
                e(f"  v_add_f32 v{base+r}, v{base+r}, v{base+4*k2+r}")
        e(f"  v_cvt_pk_bf16_f32 v{base}, v{base}, v{base+1}")
        e(f"  v_cvt_pk_bf16_f32 v{base+1}, v{base+2}, v{base+3}")
        e(f"  buffer_store_dwordx2 v[{base}:{base+1}], v{6+tl}, s[16:19], 0 offen")
    stamp()
    stamp_out()
    e("  s_endpgm")
    for tl in range(T):
        slow_path(tl, P + "ab"[tl], 8 if H else 16)

def producer_path():
    e("  s_sub_u32 s45, s36, 6")
    e("  s_lshl_b32 s46, s45, 14")
    e("  s_cmp_eq_u32 s45, 0")
    e("  s_cselect_b32 s60, s16, s20")
    e("  s_cselect_b32 s61, s17, s21")
    e("  s_mov_b32 s62, 262144")
    e("  s_mov_b32 s63, 0x00020000")
    for n in range(4):
        e(f"  v_add_u32 v24, {4*n}, v2")
        e(f"  v_add_u32 v25, {4*(n&1)}, v2")
        e(f"  v_lshlrev_b32 v25, 1, v25")
        e(f"  v_cndmask_b32 v24, v25, v24, s[48:49]")
        e(f"  v_xor_b32 v24, v24, v1")
        e(f"  v_lshlrev_b32 v24, 4, v24")
        e(f"  v_lshl_add_u32 v{4+n}, v2, 8, v24")
    for b in range(2):
        e(f"  v_add_u32 v24, {4*b}, v2")
        e(f"  v_lshlrev_b32 v24, 1, v24")
        e(f"  v_xor_b32 v24, v24, v1")
        e(f"  v_lshlrev_b32 v24, 4, v24")
        e(f"  v_lshl_add_u32 v{8+b}, v2, 13, v24")
        e(f"  v_lshl_add_u32 v{10+b}, v2, 10, v24")
    e("  s_lshl_b32 s47, s45, 19")
    e(f"  s_add_u32 s88, s12, {FLAG_OFF}")
    e("  s_addc_u32 s89, s13, 0")
    e("  s_mov_b32 s90, 65536")
    e("  s_mov_b32 s91, 0x00020000")
    e("  s_lshl_b32 s3, s2, 8")
    e("  v_mov_b32 v26, s3")
    e("  v_mov_b32 v27, 0")
    e("  s_cmp_lg_u32 s36, 6")
    e("  s_cbranch_scc1 L_noclr")
    e("  s_mov_b64 exec, 1")
    e("  buffer_store_dword v27, v26, s[88:91], 0 offen sc1")
    e("  buffer_store_dword v27, v26, s[88:91], 0 offen offset:128 sc1")
    e("  s_mov_b64 exec, -1")
    e("  s_waitcnt vmcnt(0)")
    e("L_noclr:")
    def issue_W(p, phys):
        e(f"  s_add_u32 s64, s46, {phys*32768}")
        e(f"  s_add_u32 s65, s47, {2*p*524288}")
        for n in range(16):
            e(f"  s_mov_b32 m0, s64")
            e(f"  s_add_u32 s64, s64, 1024")
            e(f"  buffer_load_dwordx4 v{8 + ((n>>2)&1)}, s[24:27], s65 offen lds")
            if n < 15:
                e(f"  s_add_u32 s65, s65, 32768")
    def issue_KV(slot, soff):
        e(f"  s_add_u32 s64, s46, {slot}")
        e(f"  s_mov_b32 s65, {soff}")
        for q in range(4):
            e(f"  s_mov_b32 m0, s64")
            e(f"  s_add_u32 s64, s64, 4096")
            for n in range(4):
                e(f"  buffer_load_dwordx4 v{4+n}, s[60:63], s65 offen offset:{1024*n}{NT} lds")
            if q < 3:
                e(f"  s_add_u32 s65, s65, 4096")
    issue_W(0, 4)
    issue_W(1, 2)
    stamp()
    e("  s_waitcnt vmcnt(16)")
    e("  s_barrier")
    stamp()
    issue_KV(0, 0)
    issue_W(2, 3)
    stamp()
    e("  s_waitcnt vmcnt(32)")
    e("  s_barrier")
    stamp()
    issue_W(3, 4)
    issue_KV(32768, 16384)
    stamp()
    e("  s_waitcnt vmcnt(32)")
    e("  s_barrier")
    stamp()
    issue_KV(2*32768, 2*16384)
    stamp()
    e("  s_waitcnt vmcnt(32)")
    e("  s_barrier")
    stamp()
    issue_KV(3*32768, 3*16384)
    e("  s_barrier")
    issue_KV(4*32768, 4*16384)
    e("  s_mov_b32 s40, 0")
    e("  s_mov_b32 s41, 0")
    e(f"  s_mov_b32 s43, {5*16384}")
    e("  s_lshr_b32 s66, s38, 2")
    e("  s_and_b32 s67, s38, 3")
    e("  s_lshl_b32 s3, s66, 19")
    e("  s_lshl_b32 s64, s67, 8")
    e("  s_add_u32 s3, s3, s64")
    e("  s_add_u32 s80, s72, s3")
    e("  s_addc_u32 s81, s73, 0")
    e("  s_sub_u32 s82, 4194304, s3")
    e("  s_mov_b32 s83, 0x00020000")
    e("L_loopP:")
    stamp()
    e("  s_waitcnt vmcnt(48)")
    stamp()
    e("  s_barrier")
    stamp()
    issue_KV("s41", "s43")
    e("  s_add_u32 s41, s41, 32768")
    e("  s_cmp_ge_u32 s41, 163840")
    e("  s_cselect_b32 s41, 0, s41")
    e("  s_add_u32 s43, s43, 16384")
    e("  s_add_u32 s40, s40, 1")
    e("  s_cmp_lt_u32 s40, 11")
    e("  s_cbranch_scc1 L_loopP")
    e("  s_lshl_b32 s43, s45, 16")
    e("  s_mov_b32 s40, 0")
    e("L_loopW:")
    e("  s_waitcnt vmcnt(48)")
    e("  s_barrier")
    e("  s_add_u32 s64, s46, s41")
    e("  s_mov_b32 s65, s43")
    for n in range(16):
        e(f"  s_mov_b32 m0, s64")
        e(f"  s_add_u32 s64, s64, 1024")
        e(f"  buffer_load_dwordx4 v{10 + ((n>>2)&1)}, s[80:83], s65 offen lds")
        if n < 15:
            e(f"  s_add_u32 s65, s65, 4096")
    e("  s_add_u32 s41, s41, 32768")
    e("  s_add_u32 s43, s43, 131072")
    e("  s_add_u32 s40, s40, 1")
    e("  s_cmp_lt_u32 s40, 4")
    e("  s_cbranch_scc1 L_loopW")
    e("  s_barrier")
    e("  s_mov_b32 s84, s76")
    e("  s_mov_b32 s85, s77")
    e("  s_mov_b32 s86, 256")
    e("  s_mov_b32 s87, 0x00020000")
    e("  s_lshl_b32 s3, s37, 3")
    e("  s_add_u32 s3, s3, s66")
    e("  s_lshl_b32 s3, s3, 2")
    e("  v_mov_b32 v21, s3")
    e("  s_lshl_b32 s3, s37, 2")
    e("  s_add_u32 s3, s3, s67")
    e("  s_lshl_b32 s3, s3, 2")
    e("  v_mov_b32 v23, s3")
    e("  v_mov_b32 v20, 1")
    e("  v_mov_b32 v22, 0x10000")
    e("  s_barrier")
    e("  s_waitcnt vmcnt(0)")
    stamp()
    e("  s_barrier")
    stamp()
    e("  s_lshl_b32 s3, s37, 5")
    e("  s_add_u32 s3, s3, s66")
    e("  v_lshl_add_u32 v28, v0, 3, s3")
    e("  v_lshlrev_b32 v28, 8, v28")
    e("  s_lshl_b32 s3, s37, 2")
    e("  s_add_u32 s3, s3, s67")
    e("  s_lshl_b32 s3, s3, 3")
    e("  v_add_u32 v29, s3, v0")
    e("  v_lshlrev_b32 v29, 8, v29")
    e("  v_mov_b32 v30, 1")
    def sync(lab, vdata, vaddr, shift, target, vmem, foff):
        e("  s_cmp_lg_u32 s36, 6")
        e(f"  s_cbranch_scc1 L_sd{lab}")
        e("  s_mov_b64 exec, 1")
        e(f"  buffer_atomic_add v{vdata}, v{vaddr}, s[84:87], 0 offen sc0 sc1")
        e("  s_waitcnt vmcnt(0)")
        e(f"  v_readfirstlane_b32 s3, v{vdata}")
        if shift: e(f"  s_lshr_b32 s3, s3, {shift}")
        e(f"  s_and_b32 s3, s3, {target-1}")
        e(f"  s_cmp_lg_u32 s3, {target-1}")
        e(f"  s_cbranch_scc1 L_sw{lab}")
        e(f"  s_mov_b64 exec, {(1<<target)-1}")
        e(f"  buffer_store_dword v30, v{vmem}, s[88:91], 0 offen offset:{foff} sc1")
        e(f"  s_branch L_sx{lab}")
        e(f"L_sw{lab}:")
        e("  s_mov_b32 s40, 0")
        e(f"L_sp{lab}:")
        e(f"  buffer_load_dword v24, v26, s[88:91], 0 offen offset:{foff} sc1")
        e("  s_waitcnt vmcnt(0)")
        e("  v_readfirstlane_b32 s3, v24")
        e(f"  s_cmp_eq_u32 s3, 1")
        e(f"  s_cbranch_scc1 L_sx{lab}")
        e("  s_sleep 1")
        e("  s_add_u32 s40, s40, 1")
        e("  s_cmp_lt_u32 s40, 0x10000")
        e(f"  s_cbranch_scc1 L_sp{lab}")
        e(f"L_sx{lab}:")
        e("  s_mov_b64 exec, -1")
        e(f"L_sd{lab}:")
    sync("1", 20, 21, 0, 4, 28, 0)
    stamp()
    e("  s_barrier")
    e("  s_barrier")
    stamp()
    sync("2", 22, 23, 16, 8, 29, 128)
    stamp()
    e("  s_barrier")
    stamp()
    stamp_out()
    e("  s_endpgm")

def gen_attn():
    e(".globl standalone__gqa_block_cached__near_ridge_kernel")
    e(".p2align 8")
    e(".type standalone__gqa_block_cached__near_ridge_kernel,@function")
    e("standalone__gqa_block_cached__near_ridge_kernel:")
    e("  s_cmp_ge_u32 s2, 256")
    e("  s_cbranch_scc1 L_attn_done")
    e("  s_load_dwordx8 s[4:11], s[0:1], 0")
    e("  s_load_dwordx2 s[12:13], s[0:1], 56")
    e("  s_load_dwordx8 s[72:79], s[0:1], 32")
    if STAMP:
        e("  s_mov_b32 s50, 0")
        e(f"  v_mov_b32 v{SV}, 0")
        e(f"  v_and_b32 v{SV+2}, 63, v0")
        stamp()
    lane_setup()
    e("  s_and_b32 s3, s2, 7")
    e("  s_lshr_b32 s37, s2, 3")
    e("  s_and_b32 s38, s37, 3")
    e("  s_lshl_b32 s3, s3, 2")
    e("  s_add_u32 s38, s38, s3")
    e("  s_lshr_b32 s37, s37, 2")
    e(f"  s_mov_b32 s44, 0x{f2u(CSCALE):08x}")
    e("  s_cmp_eq_u32 s36, 6")
    e("  s_cselect_b64 s[48:49], -1, 0")
    e("  s_waitcnt lgkmcnt(0)")
    e("  s_cmp_ge_u32 s36, 6")
    e("  s_cbranch_scc1 L_prod")
    e("  s_mul_i32 s40, s37, 147456")
    e("  s_add_u32 s28, s4, s40")
    e("  s_addc_u32 s29, s5, 0")
    e("  s_mov_b32 s30, 147456")
    e("  s_mov_b32 s31, 0x00020000")
    e("  s_cmp_ge_u32 s36, 4")
    e("  s_cbranch_scc1 L_c1")
    compute_path(2)
    e("L_c1:")
    compute_path(1)
    e("L_prod:")
    e("  s_lshl_b32 s39, s38, 8")
    e("  s_add_u32 s24, s10, s39")
    e("  s_addc_u32 s25, s11, 0")
    e("  s_sub_u32 s26, 4194304, s39")
    e("  s_mov_b32 s27, 0x00020000")
    e("  s_lshl_b32 s3, s37, 5")
    e("  s_add_u32 s3, s3, s38")
    e("  s_lshl_b32 s39, s3, 18")
    e("  s_lshr_b32 s40, s3, 14")
    e("  s_add_u32 s16, s6, s39")
    e("  s_addc_u32 s17, s7, s40")
    e("  s_add_u32 s20, s8, s39")
    e("  s_addc_u32 s21, s9, s40")
    producer_path()
    e("L_attn_done:")
    e("  s_endpgm")

def desc(name, vgpr, sgpr=72):
    e(f".amdhsa_kernel {name}")
    e(f"  .amdhsa_next_free_vgpr {vgpr}")
    e(f"  .amdhsa_next_free_sgpr {sgpr}")
    e(f"  .amdhsa_accum_offset {(vgpr+3)//4*4}")
    e("  .amdhsa_group_segment_fixed_size 0")
    e("  .amdhsa_kernarg_size 64")
    e("  .amdhsa_user_sgpr_count 2")
    e("  .amdhsa_user_sgpr_kernarg_segment_ptr 1")
    e("  .amdhsa_system_sgpr_workgroup_id_x 1")
    e(".end_amdhsa_kernel")

out.append(HEADER)
gen_attn()
e('.section .rodata,"a"')
e(".p2align 6")
desc("standalone__gqa_block_cached__near_ridge_kernel", 256, 96)
txt = "\n".join(out) + "\n"
for ln in txt.split("\n"):
    m = re.search(r"buffer_.*offset:(\d+)", ln)
    if m: assert int(m.group(1)) < 4096, ln
open(sys.argv[1], "w").write(txt)
```

```python
import math, sys, struct, re

out = []
def e(s=""):
    out.append(s)

ARGS = sys.argv[2:]
STAMP = "stamp" in ARGS
NT = "" if "nont" in ARGS else " nt"

HEADER = """; Kernarg layout for this problem (64 bytes, ptrs only, base s[0:1]):
; @launch grid=(256,1,1) block=(512,1,1) lds=163840
.amdgcn_target "amdgcn-amd-amdhsa--gfx950"
.text
"""

def f2u(f):
    return struct.unpack("<I", struct.pack("<f", f))[0]

CSCALE = (128 ** -0.5) * math.log2(math.e)
PART_OFF = 16777216
STAMP_OFF = 67108864
FLAG_OFF = 50331648
SV = 252

def stamp():
    if not STAMP: return
    e("  s_memrealtime s[52:53]" if "rt" in ARGS else "  s_memtime s[52:53]")
    e("  s_waitcnt lgkmcnt(0)")
    e(f"  v_mov_b32 v{SV+1}, s52")
    e(f"  v_cmp_eq_u32 s[54:55], s50, v{SV+2}")
    e("  s_nop 1")
    e(f"  v_cndmask_b32 v{SV}, v{SV}, v{SV+1}, s[54:55]")
    e("  s_add_u32 s50, s50, 1")

def stamp_out():
    if not STAMP: return
    e("  s_mul_i32 s3, s2, 9")
    e("  s_add_u32 s3, s3, s36")
    e("  s_lshl_b32 s3, s3, 8")
    e(f"  s_add_u32 s3, s3, {STAMP_OFF}")
    e("  s_add_u32 s56, s12, s3")
    e("  s_addc_u32 s57, s13, 0")
    e("  s_mov_b32 s58, 256")
    e("  s_mov_b32 s59, 0x00020000")
    e(f"  v_lshlrev_b32 v{SV+1}, 2, v{SV+2}")
    e(f"  buffer_store_dword v{SV}, v{SV+1}, s[56:59], 0 offen")

def lane_setup():
    e("  v_lshrrev_b32 v1, 6, v0")
    e("  v_and_b32 v0, 63, v0")
    e("  s_nop 0")
    e("  v_readfirstlane_b32 s36, v1")
    e("  v_and_b32 v1, 15, v0")
    e("  v_lshrrev_b32 v2, 4, v0")

def tr_addr_setup(mode="x"):
    e("  v_bfe_u32 v24, v0, 2, 2")
    e("  v_and_b32 v25, 3, v0")
    e("  v_and_b32 v26, 1, v2")
    if mode == "x":
        e("  v_lshl_add_u32 v27, v2, 4, v24")
    elif mode == "n":
        e("  v_lshl_add_u32 v27, v2, 3, v24")
    else:
        e("  v_lshl_add_u32 v27, v26, 4, v24")
        e("  v_lshrrev_b32 v3, 1, v2")
        e("  v_lshl_add_u32 v27, v3, 3, v27")
    e("  v_lshl_add_u32 v26, v26, 2, v24")
    e("  v_lshlrev_b32 v27, 8, v27")
    e("  v_lshrrev_b32 v3, 1, v25")
    e("  v_lshl_add_u32 v27, v3, 4, v27")
    e("  v_and_b32 v3, 1, v25")
    e("  v_lshl_add_u32 v27, v3, 3, v27")
    for j in range(8):
        e(f"  v_xor_b32 v3, {j}, v26")
        e(f"  v_lshl_add_u32 v{14+j}, v3, 5, v27")

MFMA = "v_mfma_f32_16x16x32_bf16"
Qr = [28, 44]
Or = [60, 92]
Sr = [124, 140]
ONES = 156
Lr = [160, 164]
F = 168
NM = [232, 236]
Tm = [(24, 25), (6, 7)]
THR = ["s60", "s62"]
FLR = ["s61", "s63"]
def xreg(tile, ks):
    pool = list(range(28, 60, 4)) + list(range(124, 168, 4)) + list(range(200, 252, 4))
    return pool[tile * 16 + ks]

def gemm_pair(T, p, hbrows, xfn=None):
    WF = F
    if xfn is None: xfn = lambda tl, kidx: xreg(tl, 4 * p + kidx)
    def reads(kidx, j):
        tile, hb = kidx >> 1, kidx & 1
        for hh in range(2):
            off = tile * 16384 + (hbrows * hb + 4 * hh) * 256
            r = WF + 4 * j + 2 * hh
            e(f"  ds_read_b64_tr_b16 v[{r}:{r+1}], v{14+j} offset:{off}")
    for j in range(8):
        reads(0, j)
    for kidx in range(4):
        for j in range(8):
            if j % 2 == 0:
                e(f"  s_waitcnt lgkmcnt({12 if kidx < 3 else 12-2*j})")
            a = WF + 4 * j
            for tl in range(T):
                xr = xfn(tl, kidx)
                d = Or[tl] + 4 * j
                e(f"  {MFMA} v[{d}:{d+3}], v[{a}:{a+3}], v[{xr}:{xr+3}], v[{d}:{d+3}]")
            if kidx < 3:
                reads(kidx + 1, j)

def softmax_ops(tl, lab, n=16):
    S = [Sr[tl] + i for i in range(n)]
    a, b = Tm[tl]
    L = []
    if n == 16:
        L.append(f"  v_max3_f32 v{a}, v{S[0]}, v{S[1]}, v{S[2]}")
        L.append(f"  v_max3_f32 v{b}, v{S[3]}, v{S[4]}, v{S[5]}")
        L.append(f"  v_max3_f32 v{a}, v{a}, v{S[6]}, v{S[7]}")
        L.append(f"  v_max3_f32 v{b}, v{b}, v{S[8]}, v{S[9]}")
        L.append(f"  v_max3_f32 v{a}, v{a}, v{S[10]}, v{S[11]}")
        L.append(f"  v_max3_f32 v{b}, v{b}, v{S[12]}, v{S[13]}")
        L.append(f"  v_max3_f32 v{a}, v{a}, v{S[14]}, v{S[15]}")
        L.append(f"  v_max_f32 v{a}, v{a}, v{b}")
    else:
        L.append(f"  v_max3_f32 v{a}, v{S[0]}, v{S[1]}, v{S[2]}")
        L.append(f"  v_max3_f32 v{b}, v{S[3]}, v{S[4]}, v{S[5]}")
        L.append(f"  v_max3_f32 v{a}, v{a}, v{S[6]}, v{S[7]}")
        L.append(f"  v_max_f32 v{a}, v{a}, v{b}")
    L.append(f"  v_cmp_lt_f32 vcc, {THR[tl]}, v{a}\n  s_cbranch_vccnz L_slow{lab}\nL_back{lab}:")
    for i in range(n):
        L.append(f"  v_exp_f32 v{S[i]}, v{S[i]}")
    L.append("  s_nop 0")
    for i in range(n // 2):
        L.append(f"  v_cvt_pk_bf16_f32 v{S[i]}, v{S[2*i]}, v{S[2*i+1]}")
    return L

def slow_path(tl, lab, n=16):
    a, b = Tm[tl]
    e(f"L_slow{lab}:")
    e(f"  v_mov_b32 v{b}, v{a}")
    e(f"  s_nop 1")
    e(f"  v_permlane32_swap_b32 v{a}, v{b}")
    e(f"  v_max_f32 v{a}, v{a}, v{b}")
    e(f"  v_mov_b32 v{b}, v{a}")
    e(f"  s_nop 1")
    e(f"  v_permlane16_swap_b32 v{a}, v{b}")
    e(f"  v_max_f32 v{a}, v{a}, v{b}")
    e(f"  v_max_f32 v{a}, {FLR[tl]}, v{a}")
    e(f"  v_sub_f32 v{b}, 0, v{a}")
    e(f"  v_min_f32 v{b}, 0, v{b}")
    e(f"  v_exp_f32 v{b}, v{b}")
    e(f"  s_mov_b32 {THR[tl]}, 0x41000000")
    e(f"  s_mov_b32 {FLR[tl]}, 0")
    for r in list(range(NM[tl], NM[tl] + 4)) + list(range(Sr[tl], Sr[tl] + n)):
        e(f"  v_sub_f32 v{r}, v{r}, v{a}")
    for r in list(range(Or[tl], Or[tl] + 32)) + list(range(Lr[tl], Lr[tl] + 4)):
        e(f"  v_mul_f32 v{r}, v{r}, v{b}")
    e(f"  s_branch L_back{lab}")

def interleave(main, fill, start=0, per=4):
    fi = 0
    for gi, g in enumerate(main):
        for s_ in g: e(s_)
        if gi >= start:
            for _ in range(per):
                if fi < len(fill):
                    e(fill[fi]); fi += 1
    while fi < len(fill):
        e(fill[fi]); fi += 1

def compute_path(T):
    P = f"c{T}"
    H = (T == 1)
    def unit_step(xfn, xreads):
        def reads(hb, j):
            for hh in range(2):
                off = (32 * hb + 4 * hh) * 256
                r = F + 4 * j + 2 * hh
                e(f"  ds_read_b64_tr_b16 v[{r}:{r+1}], v{14+j} offset:{off}")
        xreads()
        for j in range(8):
            reads(0, j)
        for hb in range(2):
            for j in range(8):
                if j % 2 == 0:
                    e(f"  s_waitcnt lgkmcnt({12 if hb == 0 else 12-2*j})")
                a_ = F + 4 * j
                for tl in range(T):
                    xr = xfn(tl, hb)
                    d = Or[tl] + 4 * j
                    e(f"  {MFMA} v[{d}:{d+3}], v[{a_}:{a_+3}], v[{xr}:{xr+3}], v[{d}:{d+3}]")
                if hb == 0:
                    reads(1, j)
    if H:
        e("  s_sub_u32 s49, s36, 4")
        e("  v_add_u32 v25, 128, v1")
        e("  v_lshlrev_b32 v25, 10, v25")
        e("  v_lshl_add_u32 v4, v2, 4, v25")
        for ks in range(16):
            r = xreg(0, ks)
            e(f"  buffer_load_dwordx4 v[{r}:{r+3}], v4, s[28:31], 0 offen offset:{64*ks}")
    else:
        e("  s_lshl_b32 s3, s36, 12")
        e("  s_add_u32 s3, s3, 16384")
        e("  v_lshrrev_b32 v24, 1, v1")
        e("  v_xor_b32 v25, v2, v24")
        e("  v_lshlrev_b32 v26, 7, v1")
        e("  v_add_u32 v26, s3, v26")
        e("  v_lshl_add_u32 v4, v25, 4, v26")
        e("  v_xor_b32 v25, 4, v25")
        e("  v_lshl_add_u32 v5, v25, 4, v26")
    tr_addr_setup("n")
    for tl in range(T):
        for r in range(Or[tl], Or[tl] + 32):
            e(f"  v_mov_b32 v{r}, 0")
    if H:
        for u in range(8):
            stamp()
            e("  s_barrier")
            stamp()
            if u == 0:
                e("  s_waitcnt vmcnt(0)")
            else:
                d = 32768 if u != 4 else -98304
                e(f"  s_mov_b32 s3, {d & 0xffffffff}")
                for j in range(8):
                    e(f"  v_add_u32 v{14+j}, s3, v{14+j}")
            unit_step(lambda tl, hb: xreg(0, 2 * u + hb), lambda: None)
    else:
        e("  s_mov_b32 s40, 0")
        e(f"L_q{P}:")
        stamp()
        e("  s_barrier")
        stamp()
        def xreads():
            for tl in range(2):
                for hb in range(2):
                    r = 124 + 8 * tl + 4 * hb
                    e(f"  ds_read_b128 v[{r}:{r+3}], v{4+hb} offset:{2048*tl}")
        unit_step(lambda tl, hb: 124 + 8 * tl + 4 * hb, xreads)
        e("  s_add_u32 s40, s40, 1")
        e("  s_cmp_eq_u32 s40, 4")
        e("  s_mov_b32 s39, 0x8000")
        e("  s_cselect_b32 s3, 0xfffe8000, s39")
        for r in [4, 5] + list(range(14, 22)):
            e(f"  v_add_u32 v{r}, s3, v{r}")
        e("  s_cmp_lt_u32 s40, 8")
        e(f"  s_cbranch_scc1 L_q{P}")
    cur = 3 * 32768 if H else 4 * 32768
    e(f"  v_mul_u32_u24 v3, {4*256}, v2")
    e(f"  v_add_u32 v3, {(cur - 131072) & 0xffffffff}, v3")
    if H:
        e("  s_lshl_b32 s3, s49, 13")
        e("  v_subrev_u32 v3, s3, v3")
        e("  s_add_u32 s3, s3, 131072")
    else:
        e("  s_mov_b32 s3, 131072")
    for j in range(8):
        e(f"  v_sub_u32 v{14+j}, v{14+j}, v3")
    e("  v_and_b32 v26, 1, v2")
    e("  v_lshrrev_b32 v27, 1, v2")
    e("  v_lshl_add_u32 v26, v26, 1, v27")
    e("  v_xor_b32 v26, v26, v1")
    for s in range(4):
        e(f"  v_xor_b32 v3, {4*s}, v26")
        e(f"  v_lshlrev_b32 v3, 4, v3")
        e(f"  v_lshl_add_u32 v{10+s}, v1, 8, v3")
        e(f"  v_add_u32 v{10+s}, s3, v{10+s}")
    e("  s_barrier")
    NF = 8 if H else 16
    def kread(idx):
        t, s = idx >> 2, idx & 3
        a = F + 4 * idx
        return f"  ds_read_b128 v[{a}:{a+3}], v{10+s} offset:{t*4096}"
    for idx in range(NF):
        e(kread(idx))
    for tl in range(T):
        for r in range(Or[tl], Or[tl] + 32):
            e(f"  v_mul_f32 v{r}, s44, v{r}")
        for j in range(8):
            a = Or[tl] + 4 * j
            e(f"  v_cvt_pk_bf16_f32 v{Qr[tl]+2*j}, v{a}, v{a+1}")
            e(f"  v_cvt_pk_bf16_f32 v{Qr[tl]+1+2*j}, v{a+2}, v{a+3}")
    for tl in range(T):
        for r in range(Or[tl], Or[tl] + 32):
            e(f"  v_mov_b32 v{r}, 0")
    for tl in range(T):
        for s in range(4):
            e(f"  v_permlane16_swap_b32 v{Qr[tl]+4*s}, v{Qr[tl]+2+4*s}")
            e(f"  v_permlane16_swap_b32 v{Qr[tl]+1+4*s}, v{Qr[tl]+3+4*s}")
    for r in range(ONES, ONES + 4):
        e(f"  v_mov_b32 v{r}, 0x3f803f80")
    for tl in range(T):
        for r in list(range(Lr[tl], Lr[tl] + 4)) + list(range(NM[tl], NM[tl] + 4)):
            e(f"  v_mov_b32 v{r}, 0")
        e(f"  s_mov_b32 {THR[tl]}, 0xff800000")
        e(f"  s_mov_b32 {FLR[tl]}, 0xff800000")
    e("  s_mov_b32 s40, 0")
    e("  s_mov_b32 s41, 131072")
    e(f"L_loop{P}:")
    stamp()
    def qk(tl, idx):
        t, s = idx >> 2, idx & 3
        r = F + 4 * idx
        d = Sr[tl] + 4 * t
        q = Qr[tl] + 4 * s
        c = f"v[{NM[tl]}:{NM[tl]+3}]" if s == 0 else f"v[{d}:{d+3}]"
        return f"  {MFMA} v[{d}:{d+3}], v[{r}:{r+3}], v[{q}:{q+3}], {c}"
    def vreads(idx):
        r = F + 4 * idx
        u, j = idx >> 3, idx & 7
        return [f"  ds_read_b64_tr_b16 v[{r+2*hh}:{r+2*hh+1}], v{14+j} offset:{16384 + u*8192 + hh*4096}" for hh in range(2)]
    def pv(tl, idx):
        u, j = idx >> 3, idx & 7
        a = F + 4 * idx
        d = Or[tl] + 4 * j
        p = Sr[tl] + 4 * u
        return f"  {MFMA} v[{d}:{d+3}], v[{a}:{a+3}], v[{p}:{p+3}], v[{d}:{d+3}]"
    def lacc(tl, u):
        p = Sr[tl] + 4 * u
        l = Lr[tl]
        return f"  {MFMA} v[{l}:{l+3}], v[{ONES}:{ONES+3}], v[{p}:{p+3}], v[{l}:{l+3}]"
    adv = ["  s_add_u32 s42, s41, 32768", "  s_cmp_ge_u32 s42, 163840", "  s_cselect_b32 s42, 0, s42", "  s_sub_u32 s3, s42, s41"]
    kadv = [f"  v_add_u32 v{r}, s3, v{r}" for r in range(10, 14)]
    vadv = [f"  v_add_u32 v{r}, s3, v{r}" for r in range(14, 22)]
    for s_ in adv: e(s_)
    if T == 2:
        for idx in range(16):
            if idx % 4 == 0: e(f"  s_waitcnt lgkmcnt({12-idx})")
            e(qk(0, idx))
        main = [[qk(1, idx)] + vreads(idx) for idx in range(16)]
        interleave(main, kadv + softmax_ops(0, P + "a"), start=1, per=3)
        e("  s_nop 1")
        main = []
        for idx in range(16):
            g = []
            if idx % 8 == 0: g.append(lacc(0, idx >> 3))
            if idx == 0: g.append("  s_waitcnt lgkmcnt(8)")
            if idx == 12: g.append("  s_waitcnt lgkmcnt(0)")
            g.append(pv(0, idx))
            main.append(g)
        interleave(main, vadv + softmax_ops(1, P + "b"), start=1, per=3)
        stamp()
        e("  s_barrier")
        stamp()
        for idx in range(16):
            if idx % 8 == 0: e(lacc(1, idx >> 3))
            e(pv(1, idx))
            e(kread(idx))
    else:
        for idx in range(8):
            if idx % 4 == 0: e(f"  s_waitcnt lgkmcnt({4+idx})")
            e(qk(0, idx))
            for s_ in vreads(idx): e(s_)
        for s_ in kadv: e(s_)
        e("  s_nop 3")
        for s_ in softmax_ops(0, P + "a", 8): e(s_)
        for s_ in vadv: e(s_)
        stamp()
        e("  s_waitcnt lgkmcnt(0)")
        e("  s_barrier")
        stamp()
        e(lacc(0, 0))
        for idx in range(8):
            e(pv(0, idx))
            e(kread(idx))
    e("  s_mov_b32 s41, s42")
    e("  s_add_u32 s40, s40, 1")
    e("  s_cmp_lt_u32 s40, 16")
    e(f"  s_cbranch_scc1 L_loop{P}")
    e("  v_lshlrev_b32 v4, 4, v0")
    e("  v_add_u32 v5, 4096, v4")
    if H:
        e("  v_add_u32 v6, 131072, v4")
        e("  s_cmp_eq_u32 s49, 0")
        e("  s_cbranch_scc1 L_mrg_r")
        e("  s_nop 4")
        for j in range(8):
            a = Or[0] + 4 * j
            e(f"  ds_write_b128 v6, v[{a}:{a+3}] offset:{1024*j}")
        e(f"  v_mov_b32 v{Lr[0]+1}, v{NM[0]}")
        e(f"  ds_write_b64 v6, v[{Lr[0]}:{Lr[0]+1}] offset:8192")
        e("  s_waitcnt lgkmcnt(0)")
        e("  s_barrier")
        e("  s_barrier")
        e("  s_barrier")
        e("  s_barrier")
        e("  s_barrier")
        stamp_out()
        e("  s_endpgm")
        e("L_mrg_r:")
        e("  s_waitcnt lgkmcnt(0)")
        e("  s_barrier")
        for j in range(8):
            a = F + 4 * j
            e(f"  ds_read_b128 v[{a}:{a+3}], v6 offset:{1024*j}")
        e(f"  ds_read_b64 v[24:25], v6 offset:8192")
        e("  s_waitcnt lgkmcnt(0)")
        e(f"  v_min_f32 v26, v25, v{NM[0]}")
        e(f"  v_sub_f32 v27, v26, v{NM[0]}")
        e(f"  v_sub_f32 v26, v26, v25")
        e(f"  v_exp_f32 v27, v27")
        e(f"  v_exp_f32 v26, v26")
        e("  s_nop 0")
        e(f"  v_mul_f32 v{Lr[0]}, v{Lr[0]}, v27")
        e(f"  v_fmac_f32 v{Lr[0]}, v24, v26")
        for r in range(32):
            e(f"  v_mul_f32 v{Or[0]+r}, v{Or[0]+r}, v27")
            e(f"  v_fmac_f32 v{Or[0]+r}, v{F+r}, v26")
    else:
        e("  s_barrier")
    if H: e("  s_mov_b32 s45, 8")
    else: e("  s_lshl_b32 s45, s36, 1")
    e("  s_mul_i32 s40, s37, 9")
    e("  s_add_u32 s40, s40, s45")
    e("  s_lshl_b32 s41, s40, 7")
    e("  s_lshl_b32 s39, s38, 2")
    e("  s_add_u32 s41, s41, s39")
    e("  s_lshl_b32 s41, s41, 10")
    e("  s_add_u32 s32, s12, s41")
    e("  s_addc_u32 s33, s13, 0")
    e(f"  s_mov_b32 s34, {131072*(T-1) + 4096}")
    e("  s_mov_b32 s35, 0x00020000")
    e("  s_mov_b32 s46, 8192")
    e("  s_mov_b32 s47, 131072")
    e("  s_mov_b32 s48, 139264")
    for tl in range(T):
        e(f"  v_rcp_f32 v{25+tl}, v{Lr[tl]}")
    e("  s_nop 0")
    for tl in range(T):
        for r in range(Or[tl], Or[tl] + 32):
            e(f"  v_mul_f32 v{r}, v{r}, v{25+tl}")
        for j in range(8):
            a = Or[tl] + 4 * j
            e(f"  v_cvt_pk_bf16_f32 v{Qr[tl]+2*j}, v{a}, v{a+1}")
            e(f"  v_cvt_pk_bf16_f32 v{Qr[tl]+1+2*j}, v{a+2}, v{a+3}")
        e("  s_nop 1")
        for s in range(4):
            e(f"  v_permlane16_swap_b32 v{Qr[tl]+4*s}, v{Qr[tl]+2+4*s}")
            e(f"  v_permlane16_swap_b32 v{Qr[tl]+1+4*s}, v{Qr[tl]+3+4*s}")
        so = "0" if tl == 0 else "s47"
        for s in range(4):
            e(f"  buffer_store_dwordx4 v[{Qr[tl]+4*s}:{Qr[tl]+3+4*s}], v4, s[32:35], {so} offen offset:{1024*s} sc1")
    stamp()
    e("  s_lshr_b32 s42, s38, 2")
    e("  s_and_b32 s43, s38, 3")
    e("  s_lshl_b32 s41, s40, 7")
    e("  s_lshl_b32 s3, s42, 4")
    e("  s_add_u32 s41, s41, s3")
    e("  s_lshl_b32 s41, s41, 10")
    e("  s_add_u32 s28, s12, s41")
    e("  s_addc_u32 s29, s13, 0")
    e(f"  s_mov_b32 s30, {131072*(T-1) + 16384}")
    e("  s_mov_b32 s31, 0x00020000")
    tr_addr_setup("o")
    e("  s_lshl_b32 s3, s43, 15")
    for j in range(8):
        e(f"  v_add_u32 v{14+j}, s3, v{14+j}")
    for tl in range(T):
        for r in range(Or[tl], Or[tl] + 32):
            e(f"  v_mov_b32 v{r}, 0")
    e("  s_lshl_b32 s3, s37, 2")
    e("  s_add_u32 s3, s3, s43")
    e("  s_lshl_b32 s41, s42, 5")
    e("  s_add_u32 s41, s41, s3")
    e("  s_mul_i32 s41, s41, 9")
    e("  s_add_u32 s41, s41, s45")
    e("  s_lshl_b32 s41, s41, 13")
    e(f"  s_add_u32 s41, s41, {PART_OFF}")
    e("  s_add_u32 s20, s12, s41")
    e("  s_addc_u32 s21, s13, 0")
    e(f"  s_mov_b32 s22, {8192*T}")
    e("  s_mov_b32 s23, 0x00020000")
    e("  s_mul_i32 s41, s3, 9")
    e("  s_add_u32 s41, s41, s45")
    e("  s_lshl_b32 s41, s41, 3")
    e("  s_add_u32 s41, s41, s42")
    e("  s_lshl_b32 s41, s41, 10")
    e(f"  s_add_u32 s41, s41, {PART_OFF}")
    e("  s_add_u32 s24, s12, s41")
    e("  s_addc_u32 s25, s13, 0")
    e(f"  s_mov_b32 s26, {7*2359296 + 8192*(T-1) + 1024}")
    e("  s_mov_b32 s27, 0x00020000")
    e("  s_mul_i32 s41, s37, 144")
    e("  s_lshl_b32 s39, s45, 4")
    e("  s_add_u32 s41, s41, s39")
    e("  s_lshl_b32 s41, s41, 10")
    e("  s_lshl_b32 s39, s43, 8")
    e("  s_add_u32 s41, s41, s39")
    e("  s_lshl_b32 s39, s42, 5")
    e("  s_add_u32 s41, s41, s39")
    e("  s_add_u32 s16, s74, s41")
    e("  s_addc_u32 s17, s75, 0")
    e("  s_sub_u32 s18, 1179648, s41")
    e("  s_mov_b32 s19, 0x00020000")
    e("  v_lshlrev_b32 v6, 10, v1")
    e("  v_lshl_add_u32 v6, v2, 3, v6")
    e("  v_add_u32 v7, 16384, v6")
    e("  s_waitcnt vmcnt(0)")
    e("  s_barrier")
    gemm_pair(T, 0, 32, lambda tl, kidx: Qr[tl] + 4 * kidx)
    e("  s_barrier")
    stamp()
    for q in range(3):
        e(f"  s_add_u32 s3, s43, {1+q}")
        e(f"  s_and_b32 s3, s3, 3")
        e(f"  s_lshl_b32 s{64+q}, s3, 12")
        e(f"  s_add_u32 s{68+q}, s{64+q}, 131072")
    for q in range(3):
        for tl in range(T):
            for kk in range(4):
                r = xreg(tl, 4 * (q + 1) + kk)
                so = f"s{64+q}" if tl == 0 else f"s{68+q}"
                e(f"  buffer_load_dwordx4 v[{r}:{r+3}], v4, s[28:31], {so} offen offset:{1024*kk} sc1")
    for q in range(3):
        e(f"  s_add_u32 s3, s43, {1+q}")
        e(f"  s_and_b32 s3, s3, 3")
        e(f"  s_cmp_eq_u32 s3, 0")
        e(f"  s_mov_b32 s39, 0x8000")
        e(f"  s_cselect_b32 s3, 0xfffe8000, s39")
        for j in range(8):
            e(f"  v_add_u32 v{14+j}, s3, v{14+j}")
        e(f"  s_waitcnt vmcnt({4*T*(2-q)})")
        gemm_pair(T, q + 1, 32)
    e("  s_nop 7")
    for tl in range(T):
        so = "0" if tl == 0 else "s46"
        for j in range(8):
            a = Or[tl] + 4 * j
            e(f"  buffer_store_dwordx4 v[{a}:{a+3}], v{4 + (j>>2)}, s[20:23], {so} offen offset:{1024*(j&3)} sc1")
    e("  s_waitcnt vmcnt(0)")
    stamp()
    e("  s_barrier")
    e("  s_barrier")
    stamp()
    for tl in range(T):
        for k2 in range(8):
            e(f"  s_mov_b32 s3, {k2*2359296 + tl*8192}")
            r = 124 + 32 * tl + 4 * k2
            e(f"  buffer_load_dwordx4 v[{r}:{r+3}], v4, s[24:27], s3 offen sc1")
    for tl in range(T):
        base = 124 + 32 * tl
        for k2 in range(1, 8):
            e(f"  s_waitcnt vmcnt({8*(T-1-tl) + 7-k2})")
            for r in range(4):
                e(f"  v_add_f32 v{base+r}, v{base+r}, v{base+4*k2+r}")
        e(f"  v_cvt_pk_bf16_f32 v{base}, v{base}, v{base+1}")
        e(f"  v_cvt_pk_bf16_f32 v{base+1}, v{base+2}, v{base+3}")
        e(f"  buffer_store_dwordx2 v[{base}:{base+1}], v{6+tl}, s[16:19], 0 offen")
    stamp()
    stamp_out()
    e("  s_endpgm")
    for tl in range(T):
        slow_path(tl, P + "ab"[tl], 8 if H else 16)

def producer_path():
    e("  s_sub_u32 s45, s36, 6")
    e("  s_lshl_b32 s46, s45, 14")
    e("  s_cmp_eq_u32 s45, 0")
    e("  s_cselect_b32 s60, s16, s20")
    e("  s_cselect_b32 s61, s17, s21")
    e("  s_mov_b32 s62, 262144")
    e("  s_mov_b32 s63, 0x00020000")
    for n in range(4):
        e(f"  v_add_u32 v24, {4*n}, v2")
        e(f"  v_add_u32 v25, {4*(n&1)}, v2")
        e(f"  v_lshlrev_b32 v25, 1, v25")
        e(f"  v_cndmask_b32 v24, v25, v24, s[48:49]")
        e(f"  v_xor_b32 v24, v24, v1")
        e(f"  v_lshlrev_b32 v24, 4, v24")
        e(f"  v_lshl_add_u32 v{4+n}, v2, 8, v24")
    for b in range(2):
        e(f"  v_add_u32 v24, {4*b}, v2")
        e(f"  v_lshlrev_b32 v24, 1, v24")
        e(f"  v_xor_b32 v24, v24, v1")
        e(f"  v_lshlrev_b32 v24, 4, v24")
        e(f"  v_lshl_add_u32 v{8+b}, v2, 13, v24")
        e(f"  v_lshl_add_u32 v{10+b}, v2, 10, v24")
    e("  s_lshl_b32 s47, s45, 19")
    e(f"  s_add_u32 s88, s12, {FLAG_OFF}")
    e("  s_addc_u32 s89, s13, 0")
    e("  s_mov_b32 s90, 65536")
    e("  s_mov_b32 s91, 0x00020000")
    e("  s_lshl_b32 s3, s2, 8")
    e("  v_mov_b32 v26, s3")
    e("  v_mov_b32 v27, 0")
    e("  s_cmp_lg_u32 s36, 6")
    e("  s_cbranch_scc1 L_noclr")
    e("  s_mov_b64 exec, 1")
    e("  buffer_store_dword v27, v26, s[88:91], 0 offen sc1")
    e("  buffer_store_dword v27, v26, s[88:91], 0 offen offset:128 sc1")
    e("  s_mov_b64 exec, -1")
    e("  s_waitcnt vmcnt(0)")
    e("L_noclr:")
    e("  v_lshrrev_b32 v24, 3, v0")
    e("  v_and_b32 v25, 7, v0")
    for b_ in range(2):
        e(f"  v_add_u32 v31, {4*b_}, v2")
        e(f"  v_xor_b32 v31, v31, v25")
        e(f"  v_lshlrev_b32 v31, 4, v31")
        e(f"  v_lshl_add_u32 v{12+b_}, v24, 10, v31")
    uidc = [0]
    def issue_U(u, phys):
        uidc[0] += 1
        e(f"  s_add_u32 s64, s46, {phys*32768}")
        e("  s_cmp_eq_u32 s45, 0")
        e(f"  s_cbranch_scc0 L_ux{uidc[0]}")
        e(f"  s_mov_b32 s65, {u*524288}")
        for n in range(16):
            e(f"  s_mov_b32 m0, s64")
            e(f"  s_add_u32 s64, s64, 1024")
            e(f"  buffer_load_dwordx4 v{8 + ((n>>1)&1)}, s[24:27], s65 offen lds")
            if n < 15:
                e(f"  s_add_u32 s65, s65, 32768")
        e(f"  s_branch L_uj{uidc[0]}")
        e(f"L_ux{uidc[0]}:")
        e(f"  s_mov_b32 s65, {u*128}")
        for n in range(16):
            e(f"  s_mov_b32 m0, s64")
            e(f"  s_add_u32 s64, s64, 1024")
            e(f"  buffer_load_dwordx4 v{12 + (n&1)}, s[28:31], s65 offen lds")
            if n < 15:
                e(f"  s_add_u32 s65, s65, 8192")
        e(f"L_uj{uidc[0]}:")
    def issue_KV(slot, soff):
        e(f"  s_add_u32 s64, s46, {slot}")
        e(f"  s_mov_b32 s65, {soff}")
        for q in range(4):
            e(f"  s_mov_b32 m0, s64")
            e(f"  s_add_u32 s64, s64, 4096")
            for n in range(4):
                e(f"  buffer_load_dwordx4 v{4+n}, s[60:63], s65 offen offset:{1024*n}{NT} lds")
            if q < 3:
                e(f"  s_add_u32 s65, s65, 4096")
    issue_U(0, 0)
    issue_U(1, 1)
    issue_U(2, 2)
    waits = [32, 48, 48, 48, 32, 32, 32, 32]
    for u in range(8):
        stamp()
        e(f"  s_waitcnt vmcnt({waits[u]})")
        e("  s_barrier")
        stamp()
        if u == 0:
            issue_U(3, 3)
            issue_KV(4 * 32768, 0)
        elif u <= 4:
            issue_U(u + 3, u - 1)
        else:
            issue_KV((u - 5) * 32768, (u - 4) * 16384)
    e("  s_barrier")
    issue_KV(3*32768, 4*16384)
    e("  s_mov_b32 s40, 0")
    e("  s_mov_b32 s41, 131072")
    e(f"  s_mov_b32 s43, {5*16384}")
    e("  s_lshr_b32 s66, s38, 2")
    e("  s_and_b32 s67, s38, 3")
    e("  s_lshl_b32 s3, s66, 19")
    e("  s_lshl_b32 s64, s67, 8")
    e("  s_add_u32 s3, s3, s64")
    e("  s_add_u32 s80, s72, s3")
    e("  s_addc_u32 s81, s73, 0")
    e("  s_sub_u32 s82, 4194304, s3")
    e("  s_mov_b32 s83, 0x00020000")
    e("L_loopP:")
    stamp()
    e("  s_waitcnt vmcnt(48)")
    stamp()
    e("  s_barrier")
    stamp()
    issue_KV("s41", "s43")
    e("  s_add_u32 s41, s41, 32768")
    e("  s_cmp_ge_u32 s41, 163840")
    e("  s_cselect_b32 s41, 0, s41")
    e("  s_add_u32 s43, s43, 16384")
    e("  s_add_u32 s40, s40, 1")
    e("  s_cmp_lt_u32 s40, 11")
    e("  s_cbranch_scc1 L_loopP")
    e("  s_lshl_b32 s43, s45, 16")
    e("  s_mov_b32 s40, 0")
    e("L_loopW:")
    e("  s_waitcnt vmcnt(48)")
    e("  s_barrier")
    e("  s_add_u32 s64, s46, s41")
    e("  s_mov_b32 s65, s43")
    for n in range(16):
        e(f"  s_mov_b32 m0, s64")
        e(f"  s_add_u32 s64, s64, 1024")
        e(f"  buffer_load_dwordx4 v{10 + ((n>>2)&1)}, s[80:83], s65 offen lds")
        if n < 15:
            e(f"  s_add_u32 s65, s65, 4096")
    e("  s_add_u32 s41, s41, 32768")
    e("  s_add_u32 s43, s43, 131072")
    e("  s_add_u32 s40, s40, 1")
    e("  s_cmp_lt_u32 s40, 4")
    e("  s_cbranch_scc1 L_loopW")
    e("  s_barrier")
    e("  s_mov_b32 s84, s76")
    e("  s_mov_b32 s85, s77")
    e("  s_mov_b32 s86, 256")
    e("  s_mov_b32 s87, 0x00020000")
    e("  s_lshl_b32 s3, s37, 3")
    e("  s_add_u32 s3, s3, s66")
    e("  s_lshl_b32 s3, s3, 2")
    e("  v_mov_b32 v21, s3")
    e("  s_lshl_b32 s3, s37, 2")
    e("  s_add_u32 s3, s3, s67")
    e("  s_lshl_b32 s3, s3, 2")
    e("  v_mov_b32 v23, s3")
    e("  v_mov_b32 v20, 1")
    e("  v_mov_b32 v22, 0x10000")
    e("  s_barrier")
    e("  s_waitcnt vmcnt(0)")
    stamp()
    e("  s_barrier")
    stamp()
    e("  s_lshl_b32 s3, s37, 5")
    e("  s_add_u32 s3, s3, s66")
    e("  v_lshl_add_u32 v28, v0, 3, s3")
    e("  v_lshlrev_b32 v28, 8, v28")
    e("  s_lshl_b32 s3, s37, 2")
    e("  s_add_u32 s3, s3, s67")
    e("  s_lshl_b32 s3, s3, 3")
    e("  v_add_u32 v29, s3, v0")
    e("  v_lshlrev_b32 v29, 8, v29")
    e("  v_mov_b32 v30, 1")
    def sync(lab, vdata, vaddr, shift, target, vmem, foff):
        e("  s_cmp_lg_u32 s36, 6")
        e(f"  s_cbranch_scc1 L_sd{lab}")
        e("  s_mov_b64 exec, 1")
        e(f"  buffer_atomic_add v{vdata}, v{vaddr}, s[84:87], 0 offen sc0 sc1")
        e("  s_waitcnt vmcnt(0)")
        e(f"  v_readfirstlane_b32 s3, v{vdata}")
        if shift: e(f"  s_lshr_b32 s3, s3, {shift}")
        e(f"  s_and_b32 s3, s3, {target-1}")
        e(f"  s_cmp_lg_u32 s3, {target-1}")
        e(f"  s_cbranch_scc1 L_sw{lab}")
        e(f"  s_mov_b64 exec, {(1<<target)-1}")
        e(f"  buffer_store_dword v30, v{vmem}, s[88:91], 0 offen offset:{foff} sc1")
        e(f"  s_branch L_sx{lab}")
        e(f"L_sw{lab}:")
        e("  s_mov_b32 s40, 0")
        e(f"L_sp{lab}:")
        e(f"  buffer_load_dword v24, v26, s[88:91], 0 offen offset:{foff} sc1")
        e("  s_waitcnt vmcnt(0)")
        e("  v_readfirstlane_b32 s3, v24")
        e(f"  s_cmp_eq_u32 s3, 1")
        e(f"  s_cbranch_scc1 L_sx{lab}")
        e("  s_sleep 1")
        e("  s_add_u32 s40, s40, 1")
        e("  s_cmp_lt_u32 s40, 0x10000")
        e(f"  s_cbranch_scc1 L_sp{lab}")
        e(f"L_sx{lab}:")
        e("  s_mov_b64 exec, -1")
        e(f"L_sd{lab}:")
    sync("1", 20, 21, 0, 4, 28, 0)
    stamp()
    e("  s_barrier")
    e("  s_barrier")
    stamp()
    sync("2", 22, 23, 16, 8, 29, 128)
    stamp()
    e("  s_barrier")
    stamp()
    stamp_out()
    e("  s_endpgm")

def gen_attn():
    e(".globl standalone__gqa_block_cached__near_ridge_kernel")
    e(".p2align 8")
    e(".type standalone__gqa_block_cached__near_ridge_kernel,@function")
    e("standalone__gqa_block_cached__near_ridge_kernel:")
    e("  s_cmp_ge_u32 s2, 256")
    e("  s_cbranch_scc1 L_attn_done")
    e("  s_load_dwordx8 s[4:11], s[0:1], 0")
    e("  s_load_dwordx2 s[12:13], s[0:1], 56")
    e("  s_load_dwordx8 s[72:79], s[0:1], 32")
    if STAMP:
        e("  s_mov_b32 s50, 0")
        e(f"  v_mov_b32 v{SV}, 0")
        e(f"  v_and_b32 v{SV+2}, 63, v0")
        stamp()
    lane_setup()
    e("  s_and_b32 s3, s2, 7")
    e("  s_lshr_b32 s37, s2, 3")
    e("  s_and_b32 s38, s37, 3")
    e("  s_lshl_b32 s3, s3, 2")
    e("  s_add_u32 s38, s38, s3")
    e("  s_lshr_b32 s37, s37, 2")
    e(f"  s_mov_b32 s44, 0x{f2u(CSCALE):08x}")
    e("  s_cmp_eq_u32 s36, 6")
    e("  s_cselect_b64 s[48:49], -1, 0")
    e("  s_waitcnt lgkmcnt(0)")
    e("  s_mul_i32 s40, s37, 147456")
    e("  s_add_u32 s28, s4, s40")
    e("  s_addc_u32 s29, s5, 0")
    e("  s_mov_b32 s30, 147456")
    e("  s_mov_b32 s31, 0x00020000")
    e("  s_cmp_ge_u32 s36, 6")
    e("  s_cbranch_scc1 L_prod")
    e("  s_cmp_ge_u32 s36, 4")
    e("  s_cbranch_scc1 L_c1")
    compute_path(2)
    e("L_c1:")
    compute_path(1)
    e("L_prod:")
    e("  s_lshl_b32 s39, s38, 8")
    e("  s_add_u32 s24, s10, s39")
    e("  s_addc_u32 s25, s11, 0")
    e("  s_sub_u32 s26, 4194304, s39")
    e("  s_mov_b32 s27, 0x00020000")
    e("  s_lshl_b32 s3, s37, 5")
    e("  s_add_u32 s3, s3, s38")
    e("  s_lshl_b32 s39, s3, 18")
    e("  s_lshr_b32 s40, s3, 14")
    e("  s_add_u32 s16, s6, s39")
    e("  s_addc_u32 s17, s7, s40")
    e("  s_add_u32 s20, s8, s39")
    e("  s_addc_u32 s21, s9, s40")
    producer_path()
    e("L_attn_done:")
    e("  s_endpgm")

def desc(name, vgpr, sgpr=72):
    e(f".amdhsa_kernel {name}")
    e(f"  .amdhsa_next_free_vgpr {vgpr}")
    e(f"  .amdhsa_next_free_sgpr {sgpr}")
    e(f"  .amdhsa_accum_offset {(vgpr+3)//4*4}")
    e("  .amdhsa_group_segment_fixed_size 0")
    e("  .amdhsa_kernarg_size 64")
    e("  .amdhsa_user_sgpr_count 2")
    e("  .amdhsa_user_sgpr_kernarg_segment_ptr 1")
    e("  .amdhsa_system_sgpr_workgroup_id_x 1")
    e(".end_amdhsa_kernel")

out.append(HEADER)
gen_attn()
e('.section .rodata,"a"')
e(".p2align 6")
desc("standalone__gqa_block_cached__near_ridge_kernel", 256, 96)
txt = "\n".join(out) + "\n"
for ln in txt.split("\n"):
    m = re.search(r"buffer_.*offset:(\d+)", ln)
    if m: assert int(m.group(1)) < 4096, ln
open(sys.argv[1], "w").write(txt)
```

```python
import math, sys, struct, re

out = []
def e(s=""):
    out.append(s)

ARGS = sys.argv[2:]
STAMP = "stamp" in ARGS
NT = "" if "nont" in ARGS else " nt"

HEADER = """; Kernarg layout for this problem (64 bytes, ptrs only, base s[0:1]):
; @launch grid=(256,1,1) block=(512,1,1) lds=163840
.amdgcn_target "amdgcn-amd-amdhsa--gfx950"
.text
"""

def f2u(f):
    return struct.unpack("<I", struct.pack("<f", f))[0]

CSCALE = (128 ** -0.5) * math.log2(math.e)
PART_OFF = 16777216
STAMP_OFF = 67108864
FLAG_OFF = 50331648
SV = 252

INLOOP = [False]
def stamp():
    if not STAMP: return
    if INLOOP[0] and "rt" in ARGS: return
    e("  s_memrealtime s[52:53]" if "rt" in ARGS else "  s_memtime s[52:53]")
    e("  s_waitcnt lgkmcnt(0)")
    e(f"  v_mov_b32 v{SV+1}, s52")
    e(f"  v_cmp_eq_u32 s[54:55], s50, v{SV+2}")
    e("  s_nop 1")
    e(f"  v_cndmask_b32 v{SV}, v{SV}, v{SV+1}, s[54:55]")
    e("  s_add_u32 s50, s50, 1")

def stamp_out():
    if not STAMP: return
    e("  s_mul_i32 s3, s2, 9")
    e("  s_add_u32 s3, s3, s36")
    e("  s_lshl_b32 s3, s3, 8")
    e(f"  s_add_u32 s3, s3, {STAMP_OFF}")
    e("  s_add_u32 s56, s12, s3")
    e("  s_addc_u32 s57, s13, 0")
    e("  s_mov_b32 s58, 256")
    e("  s_mov_b32 s59, 0x00020000")
    e(f"  v_lshlrev_b32 v{SV+1}, 2, v{SV+2}")
    e(f"  buffer_store_dword v{SV}, v{SV+1}, s[56:59], 0 offen")

def lane_setup():
    e("  v_lshrrev_b32 v1, 6, v0")
    e("  v_and_b32 v0, 63, v0")
    e("  s_nop 0")
    e("  v_readfirstlane_b32 s36, v1")
    e("  v_and_b32 v1, 15, v0")
    e("  v_lshrrev_b32 v2, 4, v0")

def tr_addr_setup(mode="x"):
    e("  v_bfe_u32 v24, v0, 2, 2")
    e("  v_and_b32 v25, 3, v0")
    e("  v_and_b32 v26, 1, v2")
    if mode == "x":
        e("  v_lshl_add_u32 v27, v2, 4, v24")
    elif mode == "n":
        e("  v_lshl_add_u32 v27, v2, 3, v24")
    else:
        e("  v_lshl_add_u32 v27, v26, 4, v24")
        e("  v_lshrrev_b32 v3, 1, v2")
        e("  v_lshl_add_u32 v27, v3, 3, v27")
    e("  v_lshl_add_u32 v26, v26, 2, v24")
    e("  v_lshlrev_b32 v27, 8, v27")
    e("  v_lshrrev_b32 v3, 1, v25")
    e("  v_lshl_add_u32 v27, v3, 4, v27")
    e("  v_and_b32 v3, 1, v25")
    e("  v_lshl_add_u32 v27, v3, 3, v27")
    for j in range(8):
        e(f"  v_xor_b32 v3, {j}, v26")
        e(f"  v_lshl_add_u32 v{14+j}, v3, 5, v27")

MFMA = "v_mfma_f32_16x16x32_bf16"
Qr = [28, 44]
Or = [60, 92]
Sr = [124, 140]
ONES = 156
Lr = [160, 164]
F = 168
NM = [232, 236]
Tm = [(24, 25), (6, 7)]
THR = ["s60", "s62"]
FLR = ["s61", "s63"]
def xreg(tile, ks):
    pool = list(range(28, 60, 4)) + list(range(124, 168, 4)) + list(range(200, 252, 4))
    return pool[tile * 16 + ks]

def gemm_pair(T, p, hbrows, xfn=None):
    WF = F
    if xfn is None: xfn = lambda tl, kidx: xreg(tl, 4 * p + kidx)
    def reads(kidx, j):
        tile, hb = kidx >> 1, kidx & 1
        for hh in range(2):
            off = tile * 16384 + (hbrows * hb + 4 * hh) * 256
            r = WF + 4 * j + 2 * hh
            e(f"  ds_read_b64_tr_b16 v[{r}:{r+1}], v{14+j} offset:{off}")
    for j in range(8):
        reads(0, j)
    for kidx in range(4):
        for j in range(8):
            if j % 2 == 0:
                e(f"  s_waitcnt lgkmcnt({12 if kidx < 3 else 12-2*j})")
            a = WF + 4 * j
            for tl in range(T):
                xr = xfn(tl, kidx)
                d = Or[tl] + 4 * j
                e(f"  {MFMA} v[{d}:{d+3}], v[{a}:{a+3}], v[{xr}:{xr+3}], v[{d}:{d+3}]")
            if kidx < 3:
                reads(kidx + 1, j)

def softmax_ops(tl, lab, n=16):
    S = [Sr[tl] + i for i in range(n)]
    a, b = Tm[tl]
    L = []
    if n == 16:
        L.append(f"  v_max3_f32 v{a}, v{S[0]}, v{S[1]}, v{S[2]}")
        L.append(f"  v_max3_f32 v{b}, v{S[3]}, v{S[4]}, v{S[5]}")
        L.append(f"  v_max3_f32 v{a}, v{a}, v{S[6]}, v{S[7]}")
        L.append(f"  v_max3_f32 v{b}, v{b}, v{S[8]}, v{S[9]}")
        L.append(f"  v_max3_f32 v{a}, v{a}, v{S[10]}, v{S[11]}")
        L.append(f"  v_max3_f32 v{b}, v{b}, v{S[12]}, v{S[13]}")
        L.append(f"  v_max3_f32 v{a}, v{a}, v{S[14]}, v{S[15]}")
        L.append(f"  v_max_f32 v{a}, v{a}, v{b}")
    else:
        L.append(f"  v_max3_f32 v{a}, v{S[0]}, v{S[1]}, v{S[2]}")
        L.append(f"  v_max3_f32 v{b}, v{S[3]}, v{S[4]}, v{S[5]}")
        L.append(f"  v_max3_f32 v{a}, v{a}, v{S[6]}, v{S[7]}")
        L.append(f"  v_max_f32 v{a}, v{a}, v{b}")
    L.append(f"  v_cmp_lt_f32 vcc, {THR[tl]}, v{a}\n  s_cbranch_vccnz L_slow{lab}\nL_back{lab}:")
    for i in range(n):
        L.append(f"  v_exp_f32 v{S[i]}, v{S[i]}")
    L.append("  s_nop 0")
    for i in range(n // 2):
        L.append(f"  v_cvt_pk_bf16_f32 v{S[i]}, v{S[2*i]}, v{S[2*i+1]}")
    return L

def slow_path(tl, lab, n=16):
    a, b = Tm[tl]
    e(f"L_slow{lab}:")
    e(f"  v_mov_b32 v{b}, v{a}")
    e(f"  s_nop 1")
    e(f"  v_permlane32_swap_b32 v{a}, v{b}")
    e(f"  v_max_f32 v{a}, v{a}, v{b}")
    e(f"  v_mov_b32 v{b}, v{a}")
    e(f"  s_nop 1")
    e(f"  v_permlane16_swap_b32 v{a}, v{b}")
    e(f"  v_max_f32 v{a}, v{a}, v{b}")
    e(f"  v_max_f32 v{a}, {FLR[tl]}, v{a}")
    e(f"  v_sub_f32 v{b}, 0, v{a}")
    e(f"  v_min_f32 v{b}, 0, v{b}")
    e(f"  v_exp_f32 v{b}, v{b}")
    e(f"  s_mov_b32 {THR[tl]}, 0x41000000")
    e(f"  s_mov_b32 {FLR[tl]}, 0")
    for r in list(range(NM[tl], NM[tl] + 4)) + list(range(Sr[tl], Sr[tl] + n)):
        e(f"  v_sub_f32 v{r}, v{r}, v{a}")
    for r in list(range(Or[tl], Or[tl] + 32)) + list(range(Lr[tl], Lr[tl] + 4)):
        e(f"  v_mul_f32 v{r}, v{r}, v{b}")
    e(f"  s_branch L_back{lab}")

def interleave(main, fill, start=0, per=4):
    fi = 0
    for gi, g in enumerate(main):
        for s_ in g: e(s_)
        if gi >= start:
            for _ in range(per):
                if fi < len(fill):
                    e(fill[fi]); fi += 1
    while fi < len(fill):
        e(fill[fi]); fi += 1

def compute_path(T):
    P = f"c{T}"
    H = (T == 1)
    def unit_step(xfn, xreads):
        def reads(hb, j):
            for hh in range(2):
                off = (32 * hb + 4 * hh) * 256
                r = F + 4 * j + 2 * hh
                e(f"  ds_read_b64_tr_b16 v[{r}:{r+1}], v{14+j} offset:{off}")
        xreads()
        for j in range(8):
            reads(0, j)
        for hb in range(2):
            for j in range(8):
                if j % 2 == 0:
                    e(f"  s_waitcnt lgkmcnt({12 if hb == 0 else 12-2*j})")
                a_ = F + 4 * j
                for tl in range(T):
                    xr = xfn(tl, hb)
                    d = Or[tl] + 4 * j
                    e(f"  {MFMA} v[{d}:{d+3}], v[{a_}:{a_+3}], v[{xr}:{xr+3}], v[{d}:{d+3}]")
                if hb == 0:
                    reads(1, j)
    if H:
        e("  s_sub_u32 s49, s36, 4")
        e("  v_add_u32 v25, 128, v1")
        e("  v_lshlrev_b32 v25, 10, v25")
        e("  v_lshl_add_u32 v4, v2, 4, v25")
        for ks in range(16):
            r = xreg(0, ks)
            e(f"  buffer_load_dwordx4 v[{r}:{r+3}], v4, s[28:31], 0 offen offset:{64*ks}")
    else:
        e("  s_lshl_b32 s3, s36, 12")
        e("  s_add_u32 s3, s3, 16384")
        e("  v_lshrrev_b32 v24, 1, v1")
        e("  v_xor_b32 v25, v2, v24")
        e("  v_lshlrev_b32 v26, 7, v1")
        e("  v_add_u32 v26, s3, v26")
        e("  v_lshl_add_u32 v4, v25, 4, v26")
        e("  v_xor_b32 v25, 4, v25")
        e("  v_lshl_add_u32 v5, v25, 4, v26")
    tr_addr_setup("n")
    for tl in range(T):
        for r in range(Or[tl], Or[tl] + 32):
            e(f"  v_mov_b32 v{r}, 0")
    if H:
        for u in range(8):
            stamp()
            e("  s_barrier")
            stamp()
            if u == 0:
                e("  s_waitcnt vmcnt(0)")
            else:
                d = 32768 if u != 4 else -98304
                e(f"  s_mov_b32 s3, {d & 0xffffffff}")
                for j in range(8):
                    e(f"  v_add_u32 v{14+j}, s3, v{14+j}")
            unit_step(lambda tl, hb: xreg(0, 2 * u + hb), lambda: None)
    else:
        e("  s_mov_b32 s40, 0")
        e(f"L_q{P}:")
        stamp()
        e("  s_barrier")
        stamp()
        def xreads():
            for tl in range(2):
                for hb in range(2):
                    r = 124 + 8 * tl + 4 * hb
                    e(f"  ds_read_b128 v[{r}:{r+3}], v{4+hb} offset:{2048*tl}")
        unit_step(lambda tl, hb: 124 + 8 * tl + 4 * hb, xreads)
        e("  s_add_u32 s40, s40, 1")
        e("  s_cmp_eq_u32 s40, 4")
        e("  s_mov_b32 s39, 0x8000")
        e("  s_cselect_b32 s3, 0xfffe8000, s39")
        for r in [4, 5] + list(range(14, 22)):
            e(f"  v_add_u32 v{r}, s3, v{r}")
        e("  s_cmp_lt_u32 s40, 8")
        e(f"  s_cbranch_scc1 L_q{P}")
    cur = 3 * 32768 if H else 4 * 32768
    e(f"  v_mul_u32_u24 v3, {4*256}, v2")
    e(f"  v_add_u32 v3, {(cur - 131072) & 0xffffffff}, v3")
    if H:
        e("  s_lshl_b32 s3, s49, 13")
        e("  v_subrev_u32 v3, s3, v3")
        e("  s_add_u32 s3, s3, 131072")
    else:
        e("  s_mov_b32 s3, 131072")
    for j in range(8):
        e(f"  v_sub_u32 v{14+j}, v{14+j}, v3")
    e("  v_and_b32 v26, 1, v2")
    e("  v_lshrrev_b32 v27, 1, v2")
    e("  v_lshl_add_u32 v26, v26, 1, v27")
    e("  v_xor_b32 v26, v26, v1")
    for s in range(4):
        e(f"  v_xor_b32 v3, {4*s}, v26")
        e(f"  v_lshlrev_b32 v3, 4, v3")
        e(f"  v_lshl_add_u32 v{10+s}, v1, 8, v3")
        e(f"  v_add_u32 v{10+s}, s3, v{10+s}")
    e("  s_barrier")
    NF = 8 if H else 16
    def kread(idx):
        t, s = idx >> 2, idx & 3
        a = F + 4 * idx
        return f"  ds_read_b128 v[{a}:{a+3}], v{10+s} offset:{t*4096}"
    for idx in range(NF):
        e(kread(idx))
    for tl in range(T):
        for r in range(Or[tl], Or[tl] + 32):
            e(f"  v_mul_f32 v{r}, s44, v{r}")
        for j in range(8):
            a = Or[tl] + 4 * j
            e(f"  v_cvt_pk_bf16_f32 v{Qr[tl]+2*j}, v{a}, v{a+1}")
            e(f"  v_cvt_pk_bf16_f32 v{Qr[tl]+1+2*j}, v{a+2}, v{a+3}")
    for tl in range(T):
        for r in range(Or[tl], Or[tl] + 32):
            e(f"  v_mov_b32 v{r}, 0")
    for tl in range(T):
        for s in range(4):
            e(f"  v_permlane16_swap_b32 v{Qr[tl]+4*s}, v{Qr[tl]+2+4*s}")
            e(f"  v_permlane16_swap_b32 v{Qr[tl]+1+4*s}, v{Qr[tl]+3+4*s}")
    for r in range(ONES, ONES + 4):
        e(f"  v_mov_b32 v{r}, 0x3f803f80")
    for tl in range(T):
        for r in list(range(Lr[tl], Lr[tl] + 4)) + list(range(NM[tl], NM[tl] + 4)):
            e(f"  v_mov_b32 v{r}, 0")
        e(f"  s_mov_b32 {THR[tl]}, 0xff800000")
        e(f"  s_mov_b32 {FLR[tl]}, 0xff800000")
    e("  s_mov_b32 s40, 0")
    e("  s_mov_b32 s41, 131072")
    stamp()
    INLOOP[0] = True
    e(f"L_loop{P}:")
    stamp()
    def qk(tl, idx):
        t, s = idx >> 2, idx & 3
        r = F + 4 * idx
        d = Sr[tl] + 4 * t
        q = Qr[tl] + 4 * s
        c = f"v[{NM[tl]}:{NM[tl]+3}]" if s == 0 else f"v[{d}:{d+3}]"
        return f"  {MFMA} v[{d}:{d+3}], v[{r}:{r+3}], v[{q}:{q+3}], {c}"
    def vreads(idx):
        r = F + 4 * idx
        u, j = idx >> 3, idx & 7
        return [f"  ds_read_b64_tr_b16 v[{r+2*hh}:{r+2*hh+1}], v{14+j} offset:{16384 + u*8192 + hh*4096}" for hh in range(2)]
    def pv(tl, idx):
        u, j = idx >> 3, idx & 7
        a = F + 4 * idx
        d = Or[tl] + 4 * j
        p = Sr[tl] + 4 * u
        return f"  {MFMA} v[{d}:{d+3}], v[{a}:{a+3}], v[{p}:{p+3}], v[{d}:{d+3}]"
    def lacc(tl, u):
        p = Sr[tl] + 4 * u
        l = Lr[tl]
        return f"  {MFMA} v[{l}:{l+3}], v[{ONES}:{ONES+3}], v[{p}:{p+3}], v[{l}:{l+3}]"
    adv = ["  s_add_u32 s42, s41, 32768", "  s_cmp_ge_u32 s42, 163840", "  s_cselect_b32 s42, 0, s42", "  s_sub_u32 s3, s42, s41"]
    kadv = [f"  v_add_u32 v{r}, s3, v{r}" for r in range(10, 14)]
    vadv = [f"  v_add_u32 v{r}, s3, v{r}" for r in range(14, 22)]
    for s_ in adv: e(s_)
    if T == 2:
        for idx in range(16):
            if idx % 4 == 0: e(f"  s_waitcnt lgkmcnt({12-idx})")
            e(qk(0, idx))
        main = [[qk(1, idx)] + vreads(idx) for idx in range(16)]
        interleave(main, kadv + softmax_ops(0, P + "a"), start=1, per=3)
        e("  s_nop 1")
        main = []
        for idx in range(16):
            g = []
            if idx % 8 == 0: g.append(lacc(0, idx >> 3))
            if idx == 0: g.append("  s_waitcnt lgkmcnt(8)")
            if idx == 12: g.append("  s_waitcnt lgkmcnt(0)")
            g.append(pv(0, idx))
            main.append(g)
        interleave(main, vadv + softmax_ops(1, P + "b"), start=1, per=3)
        stamp()
        e("  s_barrier")
        stamp()
        for idx in range(16):
            if idx % 8 == 0: e(lacc(1, idx >> 3))
            e(pv(1, idx))
            e(kread(idx))
    else:
        for idx in range(8):
            if idx % 4 == 0: e(f"  s_waitcnt lgkmcnt({4+idx})")
            e(qk(0, idx))
            for s_ in vreads(idx): e(s_)
        for s_ in kadv: e(s_)
        e("  s_nop 3")
        for s_ in softmax_ops(0, P + "a", 8): e(s_)
        for s_ in vadv: e(s_)
        stamp()
        e("  s_waitcnt lgkmcnt(0)")
        e("  s_barrier")
        stamp()
        e(lacc(0, 0))
        for idx in range(8):
            e(pv(0, idx))
            e(kread(idx))
    e("  s_mov_b32 s41, s42")
    e("  s_add_u32 s40, s40, 1")
    e("  s_cmp_lt_u32 s40, 16")
    e(f"  s_cbranch_scc1 L_loop{P}")
    INLOOP[0] = False
    stamp()
    e("  v_lshlrev_b32 v4, 4, v0")
    e("  v_add_u32 v5, 4096, v4")
    if H:
        e("  v_add_u32 v6, 131072, v4")
        e("  s_cmp_eq_u32 s49, 0")
        e("  s_cbranch_scc1 L_mrg_r")
        e("  s_nop 4")
        for j in range(8):
            a = Or[0] + 4 * j
            e(f"  ds_write_b128 v6, v[{a}:{a+3}] offset:{1024*j}")
        e(f"  v_mov_b32 v{Lr[0]+1}, v{NM[0]}")
        e(f"  ds_write_b64 v6, v[{Lr[0]}:{Lr[0]+1}] offset:8192")
        e("  s_waitcnt lgkmcnt(0)")
        e("  s_barrier")
        e("  s_barrier")
        e("  s_barrier")
        e("  s_barrier")
        e("  s_barrier")
        stamp_out()
        e("  s_endpgm")
        e("L_mrg_r:")
        e("  s_waitcnt lgkmcnt(0)")
        e("  s_barrier")
        for j in range(8):
            a = F + 4 * j
            e(f"  ds_read_b128 v[{a}:{a+3}], v6 offset:{1024*j}")
        e(f"  ds_read_b64 v[24:25], v6 offset:8192")
        e("  s_waitcnt lgkmcnt(0)")
        e(f"  v_min_f32 v26, v25, v{NM[0]}")
        e(f"  v_sub_f32 v27, v26, v{NM[0]}")
        e(f"  v_sub_f32 v26, v26, v25")
        e(f"  v_exp_f32 v27, v27")
        e(f"  v_exp_f32 v26, v26")
        e("  s_nop 0")
        e(f"  v_mul_f32 v{Lr[0]}, v{Lr[0]}, v27")
        e(f"  v_fmac_f32 v{Lr[0]}, v24, v26")
        for r in range(32):
            e(f"  v_mul_f32 v{Or[0]+r}, v{Or[0]+r}, v27")
            e(f"  v_fmac_f32 v{Or[0]+r}, v{F+r}, v26")
    else:
        e("  s_barrier")
    if H: e("  s_mov_b32 s45, 8")
    else: e("  s_lshl_b32 s45, s36, 1")
    e("  s_mul_i32 s40, s37, 9")
    e("  s_add_u32 s40, s40, s45")
    e("  s_lshl_b32 s41, s40, 7")
    e("  s_lshl_b32 s39, s38, 2")
    e("  s_add_u32 s41, s41, s39")
    e("  s_lshl_b32 s41, s41, 10")
    e("  s_add_u32 s32, s12, s41")
    e("  s_addc_u32 s33, s13, 0")
    e(f"  s_mov_b32 s34, {131072*(T-1) + 4096}")
    e("  s_mov_b32 s35, 0x00020000")
    e("  s_mov_b32 s46, 8192")
    e("  s_mov_b32 s47, 131072")
    e("  s_mov_b32 s48, 139264")
    for tl in range(T):
        e(f"  v_rcp_f32 v{25+tl}, v{Lr[tl]}")
    e("  s_nop 0")
    for tl in range(T):
        for r in range(Or[tl], Or[tl] + 32):
            e(f"  v_mul_f32 v{r}, v{r}, v{25+tl}")
        for j in range(8):
            a = Or[tl] + 4 * j
            e(f"  v_cvt_pk_bf16_f32 v{Qr[tl]+2*j}, v{a}, v{a+1}")
            e(f"  v_cvt_pk_bf16_f32 v{Qr[tl]+1+2*j}, v{a+2}, v{a+3}")
        e("  s_nop 1")
        for s in range(4):
            e(f"  v_permlane16_swap_b32 v{Qr[tl]+4*s}, v{Qr[tl]+2+4*s}")
            e(f"  v_permlane16_swap_b32 v{Qr[tl]+1+4*s}, v{Qr[tl]+3+4*s}")
        so = "0" if tl == 0 else "s47"
        for s in range(4):
            e(f"  buffer_store_dwordx4 v[{Qr[tl]+4*s}:{Qr[tl]+3+4*s}], v4, s[32:35], {so} offen offset:{1024*s} sc1")
    stamp()
    e("  s_lshr_b32 s42, s38, 2")
    e("  s_and_b32 s43, s38, 3")
    e("  s_lshl_b32 s41, s40, 7")
    e("  s_lshl_b32 s3, s42, 4")
    e("  s_add_u32 s41, s41, s3")
    e("  s_lshl_b32 s41, s41, 10")
    e("  s_add_u32 s28, s12, s41")
    e("  s_addc_u32 s29, s13, 0")
    e(f"  s_mov_b32 s30, {131072*(T-1) + 16384}")
    e("  s_mov_b32 s31, 0x00020000")
    tr_addr_setup("o")
    e("  s_lshl_b32 s3, s43, 15")
    for j in range(8):
        e(f"  v_add_u32 v{14+j}, s3, v{14+j}")
    for tl in range(T):
        for r in range(Or[tl], Or[tl] + 32):
            e(f"  v_mov_b32 v{r}, 0")
    e("  s_lshl_b32 s3, s37, 2")
    e("  s_add_u32 s3, s3, s43")
    e("  s_lshl_b32 s41, s42, 5")
    e("  s_add_u32 s41, s41, s3")
    e("  s_mul_i32 s41, s41, 9")
    e("  s_add_u32 s41, s41, s45")
    e("  s_lshl_b32 s41, s41, 13")
    e(f"  s_add_u32 s41, s41, {PART_OFF}")
    e("  s_add_u32 s20, s12, s41")
    e("  s_addc_u32 s21, s13, 0")
    e(f"  s_mov_b32 s22, {8192*T}")
    e("  s_mov_b32 s23, 0x00020000")
    e("  s_mul_i32 s41, s3, 9")
    e("  s_add_u32 s41, s41, s45")
    e("  s_lshl_b32 s41, s41, 3")
    e("  s_add_u32 s41, s41, s42")
    e("  s_lshl_b32 s41, s41, 10")
    e(f"  s_add_u32 s41, s41, {PART_OFF}")
    e("  s_add_u32 s24, s12, s41")
    e("  s_addc_u32 s25, s13, 0")
    e(f"  s_mov_b32 s26, {7*2359296 + 8192*(T-1) + 1024}")
    e("  s_mov_b32 s27, 0x00020000")
    e("  s_mul_i32 s41, s37, 144")
    e("  s_lshl_b32 s39, s45, 4")
    e("  s_add_u32 s41, s41, s39")
    e("  s_lshl_b32 s41, s41, 10")
    e("  s_lshl_b32 s39, s43, 8")
    e("  s_add_u32 s41, s41, s39")
    e("  s_lshl_b32 s39, s42, 5")
    e("  s_add_u32 s41, s41, s39")
    e("  s_add_u32 s16, s74, s41")
    e("  s_addc_u32 s17, s75, 0")
    e("  s_sub_u32 s18, 1179648, s41")
    e("  s_mov_b32 s19, 0x00020000")
    e("  v_lshlrev_b32 v6, 10, v1")
    e("  v_lshl_add_u32 v6, v2, 3, v6")
    e("  v_add_u32 v7, 16384, v6")
    e("  s_waitcnt vmcnt(0)")
    e("  s_barrier")
    gemm_pair(T, 0, 32, lambda tl, kidx: Qr[tl] + 4 * kidx)
    e("  s_barrier")
    stamp()
    for q in range(3):
        e(f"  s_add_u32 s3, s43, {1+q}")
        e(f"  s_and_b32 s3, s3, 3")
        e(f"  s_lshl_b32 s{64+q}, s3, 12")
        e(f"  s_add_u32 s{68+q}, s{64+q}, 131072")
    for q in range(3):
        for tl in range(T):
            for kk in range(4):
                r = xreg(tl, 4 * (q + 1) + kk)
                so = f"s{64+q}" if tl == 0 else f"s{68+q}"
                e(f"  buffer_load_dwordx4 v[{r}:{r+3}], v4, s[28:31], {so} offen offset:{1024*kk} sc1")
    for q in range(3):
        e(f"  s_add_u32 s3, s43, {1+q}")
        e(f"  s_and_b32 s3, s3, 3")
        e(f"  s_cmp_eq_u32 s3, 0")
        e(f"  s_mov_b32 s39, 0x8000")
        e(f"  s_cselect_b32 s3, 0xfffe8000, s39")
        for j in range(8):
            e(f"  v_add_u32 v{14+j}, s3, v{14+j}")
        e(f"  s_waitcnt vmcnt({4*T*(2-q)})")
        gemm_pair(T, q + 1, 32)
    e("  s_nop 7")
    for tl in range(T):
        so = "0" if tl == 0 else "s46"
        for j in range(8):
            a = Or[tl] + 4 * j
            e(f"  buffer_store_dwordx4 v[{a}:{a+3}], v{4 + (j>>2)}, s[20:23], {so} offen offset:{1024*(j&3)} sc1")
    e("  s_waitcnt vmcnt(0)")
    stamp()
    e("  s_barrier")
    e("  s_barrier")
    stamp()
    for tl in range(T):
        for k2 in range(8):
            e(f"  s_mov_b32 s3, {k2*2359296 + tl*8192}")
            r = 124 + 32 * tl + 4 * k2
            e(f"  buffer_load_dwordx4 v[{r}:{r+3}], v4, s[24:27], s3 offen sc1")
    for tl in range(T):
        base = 124 + 32 * tl
        for k2 in range(1, 8):
            e(f"  s_waitcnt vmcnt({8*(T-1-tl) + 7-k2})")
            for r in range(4):
                e(f"  v_add_f32 v{base+r}, v{base+r}, v{base+4*k2+r}")
        e(f"  v_cvt_pk_bf16_f32 v{base}, v{base}, v{base+1}")
        e(f"  v_cvt_pk_bf16_f32 v{base+1}, v{base+2}, v{base+3}")
        e(f"  buffer_store_dwordx2 v[{base}:{base+1}], v{6+tl}, s[16:19], 0 offen")
    stamp()
    stamp_out()
    e("  s_endpgm")
    for tl in range(T):
        slow_path(tl, P + "ab"[tl], 8 if H else 16)

def producer_path():
    e("  s_sub_u32 s45, s36, 6")
    e("  s_lshl_b32 s46, s45, 14")
    e("  s_cmp_eq_u32 s45, 0")
    e("  s_cselect_b32 s60, s16, s20")
    e("  s_cselect_b32 s61, s17, s21")
    e("  s_mov_b32 s62, 262144")
    e("  s_mov_b32 s63, 0x00020000")
    for n in range(4):
        e(f"  v_add_u32 v24, {4*n}, v2")
        e(f"  v_add_u32 v25, {4*(n&1)}, v2")
        e(f"  v_lshlrev_b32 v25, 1, v25")
        e(f"  v_cndmask_b32 v24, v25, v24, s[48:49]")
        e(f"  v_xor_b32 v24, v24, v1")
        e(f"  v_lshlrev_b32 v24, 4, v24")
        e(f"  v_lshl_add_u32 v{4+n}, v2, 8, v24")
    for b in range(2):
        e(f"  v_add_u32 v24, {4*b}, v2")
        e(f"  v_lshlrev_b32 v24, 1, v24")
        e(f"  v_xor_b32 v24, v24, v1")
        e(f"  v_lshlrev_b32 v24, 4, v24")
        e(f"  v_lshl_add_u32 v{8+b}, v2, 13, v24")
        e(f"  v_lshl_add_u32 v{10+b}, v2, 10, v24")
    e("  s_lshl_b32 s47, s45, 19")
    e(f"  s_add_u32 s88, s12, {FLAG_OFF}")
    e("  s_addc_u32 s89, s13, 0")
    e("  s_mov_b32 s90, 65536")
    e("  s_mov_b32 s91, 0x00020000")
    e("  s_lshl_b32 s3, s2, 8")
    e("  v_mov_b32 v26, s3")
    e("  v_mov_b32 v27, 0")
    e("  s_cmp_lg_u32 s36, 6")
    e("  s_cbranch_scc1 L_noclr")
    e("  s_mov_b64 exec, 1")
    e("  buffer_store_dword v27, v26, s[88:91], 0 offen sc1")
    e("  buffer_store_dword v27, v26, s[88:91], 0 offen offset:128 sc1")
    e("  s_mov_b64 exec, -1")
    e("  s_waitcnt vmcnt(0)")
    e("L_noclr:")
    e("  v_lshrrev_b32 v24, 3, v0")
    e("  v_and_b32 v25, 7, v0")
    for b_ in range(2):
        e(f"  v_add_u32 v31, {4*b_}, v2")
        e(f"  v_xor_b32 v31, v31, v25")
        e(f"  v_lshlrev_b32 v31, 4, v31")
        e(f"  v_lshl_add_u32 v{12+b_}, v24, 10, v31")
    uidc = [0]
    def issue_U(u, phys):
        uidc[0] += 1
        e(f"  s_add_u32 s64, s46, {phys*32768}")
        e("  s_cmp_eq_u32 s45, 0")
        e(f"  s_cbranch_scc0 L_ux{uidc[0]}")
        e(f"  s_mov_b32 s65, {u*524288}")
        for n in range(16):
            e(f"  s_mov_b32 m0, s64")
            e(f"  s_add_u32 s64, s64, 1024")
            e(f"  buffer_load_dwordx4 v{8 + ((n>>1)&1)}, s[24:27], s65 offen lds")
            if n < 15:
                e(f"  s_add_u32 s65, s65, 32768")
        e(f"  s_branch L_uj{uidc[0]}")
        e(f"L_ux{uidc[0]}:")
        e(f"  s_mov_b32 s65, {u*128}")
        for n in range(16):
            e(f"  s_mov_b32 m0, s64")
            e(f"  s_add_u32 s64, s64, 1024")
            e(f"  buffer_load_dwordx4 v{12 + (n&1)}, s[28:31], s65 offen lds")
            if n < 15:
                e(f"  s_add_u32 s65, s65, 8192")
        e(f"L_uj{uidc[0]}:")
    def issue_KV(slot, soff):
        e(f"  s_add_u32 s64, s46, {slot}")
        e(f"  s_mov_b32 s65, {soff}")
        for q in range(4):
            e(f"  s_mov_b32 m0, s64")
            e(f"  s_add_u32 s64, s64, 4096")
            for n in range(4):
                e(f"  buffer_load_dwordx4 v{4+n}, s[60:63], s65 offen offset:{1024*n}{NT} lds")
            if q < 3:
                e(f"  s_add_u32 s65, s65, 4096")
    issue_U(0, 0)
    issue_U(1, 1)
    issue_U(2, 2)
    waits = [32, 48, 48, 48, 32, 32, 32, 32]
    for u in range(8):
        stamp()
        e(f"  s_waitcnt vmcnt({waits[u]})")
        e("  s_barrier")
        stamp()
        if u == 0:
            issue_U(3, 3)
            issue_KV(4 * 32768, 0)
        elif u <= 4:
            issue_U(u + 3, u - 1)
        else:
            issue_KV((u - 5) * 32768, (u - 4) * 16384)
    e("  s_barrier")
    issue_KV(3*32768, 4*16384)
    e("  s_mov_b32 s40, 0")
    e("  s_mov_b32 s41, 131072")
    e(f"  s_mov_b32 s43, {5*16384}")
    e("  s_lshr_b32 s66, s38, 2")
    e("  s_and_b32 s67, s38, 3")
    e("  s_lshl_b32 s3, s66, 19")
    e("  s_lshl_b32 s64, s67, 8")
    e("  s_add_u32 s3, s3, s64")
    e("  s_add_u32 s80, s72, s3")
    e("  s_addc_u32 s81, s73, 0")
    e("  s_sub_u32 s82, 4194304, s3")
    e("  s_mov_b32 s83, 0x00020000")
    INLOOP[0] = True
    e("L_loopP:")
    stamp()
    e("  s_waitcnt vmcnt(48)")
    stamp()
    e("  s_barrier")
    stamp()
    issue_KV("s41", "s43")
    e("  s_add_u32 s41, s41, 32768")
    e("  s_cmp_ge_u32 s41, 163840")
    e("  s_cselect_b32 s41, 0, s41")
    e("  s_add_u32 s43, s43, 16384")
    e("  s_add_u32 s40, s40, 1")
    e("  s_cmp_lt_u32 s40, 11")
    e("  s_cbranch_scc1 L_loopP")
    INLOOP[0] = False
    e("  s_lshl_b32 s43, s45, 16")
    e("  s_mov_b32 s40, 0")
    e("L_loopW:")
    e("  s_waitcnt vmcnt(48)")
    e("  s_barrier")
    e("  s_add_u32 s64, s46, s41")
    e("  s_mov_b32 s65, s43")
    for n in range(16):
        e(f"  s_mov_b32 m0, s64")
        e(f"  s_add_u32 s64, s64, 1024")
        e(f"  buffer_load_dwordx4 v{10 + ((n>>2)&1)}, s[80:83], s65 offen lds")
        if n < 15:
            e(f"  s_add_u32 s65, s65, 4096")
    e("  s_add_u32 s41, s41, 32768")
    e("  s_add_u32 s43, s43, 131072")
    e("  s_add_u32 s40, s40, 1")
    e("  s_cmp_lt_u32 s40, 4")
    e("  s_cbranch_scc1 L_loopW")
    e("  s_barrier")
    e("  s_mov_b32 s84, s76")
    e("  s_mov_b32 s85, s77")
    e("  s_mov_b32 s86, 256")
    e("  s_mov_b32 s87, 0x00020000")
    e("  s_lshl_b32 s3, s37, 3")
    e("  s_add_u32 s3, s3, s66")
    e("  s_lshl_b32 s3, s3, 2")
    e("  v_mov_b32 v21, s3")
    e("  s_lshl_b32 s3, s37, 2")
    e("  s_add_u32 s3, s3, s67")
    e("  s_lshl_b32 s3, s3, 2")
    e("  v_mov_b32 v23, s3")
    e("  v_mov_b32 v20, 1")
    e("  v_mov_b32 v22, 0x10000")
    e("  s_barrier")
    e("  s_waitcnt vmcnt(0)")
    stamp()
    e("  s_barrier")
    stamp()
    e("  s_lshl_b32 s3, s37, 5")
    e("  s_add_u32 s3, s3, s66")
    e("  v_lshl_add_u32 v28, v0, 3, s3")
    e("  v_lshlrev_b32 v28, 8, v28")
    e("  s_lshl_b32 s3, s37, 2")
    e("  s_add_u32 s3, s3, s67")
    e("  s_lshl_b32 s3, s3, 3")
    e("  v_add_u32 v29, s3, v0")
    e("  v_lshlrev_b32 v29, 8, v29")
    e("  v_mov_b32 v30, 1")
    def sync(lab, vdata, vaddr, shift, target, vmem, foff):
        e("  s_cmp_lg_u32 s36, 6")
        e(f"  s_cbranch_scc1 L_sd{lab}")
        e("  s_mov_b64 exec, 1")
        e(f"  buffer_atomic_add v{vdata}, v{vaddr}, s[84:87], 0 offen sc0 sc1")
        e("  s_waitcnt vmcnt(0)")
        e(f"  v_readfirstlane_b32 s3, v{vdata}")
        if shift: e(f"  s_lshr_b32 s3, s3, {shift}")
        e(f"  s_and_b32 s3, s3, {target-1}")
        e(f"  s_cmp_lg_u32 s3, {target-1}")
        e(f"  s_cbranch_scc1 L_sw{lab}")
        e(f"  s_mov_b64 exec, {(1<<target)-1}")
        e(f"  buffer_store_dword v30, v{vmem}, s[88:91], 0 offen offset:{foff} sc1")
        e(f"  s_branch L_sx{lab}")
        e(f"L_sw{lab}:")
        e("  s_mov_b32 s40, 0")
        e(f"L_sp{lab}:")
        e(f"  buffer_load_dword v24, v26, s[88:91], 0 offen offset:{foff} sc1")
        e("  s_waitcnt vmcnt(0)")
        e("  v_readfirstlane_b32 s3, v24")
        e(f"  s_cmp_eq_u32 s3, 1")
        e(f"  s_cbranch_scc1 L_sx{lab}")
        e("  s_sleep 1")
        e("  s_add_u32 s40, s40, 1")
        e("  s_cmp_lt_u32 s40, 0x10000")
        e(f"  s_cbranch_scc1 L_sp{lab}")
        e(f"L_sx{lab}:")
        e("  s_mov_b64 exec, -1")
        e(f"L_sd{lab}:")
    sync("1", 20, 21, 0, 4, 28, 0)
    stamp()
    e("  s_barrier")
    e("  s_barrier")
    stamp()
    sync("2", 22, 23, 16, 8, 29, 128)
    stamp()
    e("  s_barrier")
    stamp()
    stamp_out()
    e("  s_endpgm")

def gen_attn():
    e(".globl standalone__gqa_block_cached__near_ridge_kernel")
    e(".p2align 8")
    e(".type standalone__gqa_block_cached__near_ridge_kernel,@function")
    e("standalone__gqa_block_cached__near_ridge_kernel:")
    e("  s_cmp_ge_u32 s2, 256")
    e("  s_cbranch_scc1 L_attn_done")
    e("  s_load_dwordx8 s[4:11], s[0:1], 0")
    e("  s_load_dwordx2 s[12:13], s[0:1], 56")
    e("  s_load_dwordx8 s[72:79], s[0:1], 32")
    if STAMP:
        e("  s_mov_b32 s50, 0")
        e(f"  v_mov_b32 v{SV}, 0")
        e(f"  v_and_b32 v{SV+2}, 63, v0")
        stamp()
    lane_setup()
    e("  s_and_b32 s3, s2, 7")
    e("  s_lshr_b32 s37, s2, 3")
    e("  s_and_b32 s38, s37, 3")
    e("  s_lshl_b32 s3, s3, 2")
    e("  s_add_u32 s38, s38, s3")
    e("  s_lshr_b32 s37, s37, 2")
    e(f"  s_mov_b32 s44, 0x{f2u(CSCALE):08x}")
    e("  s_cmp_eq_u32 s36, 6")
    e("  s_cselect_b64 s[48:49], -1, 0")
    e("  s_waitcnt lgkmcnt(0)")
    e("  s_mul_i32 s40, s37, 147456")
    e("  s_add_u32 s28, s4, s40")
    e("  s_addc_u32 s29, s5, 0")
    e("  s_mov_b32 s30, 147456")
    e("  s_mov_b32 s31, 0x00020000")
    e("  s_cmp_ge_u32 s36, 6")
    e("  s_cbranch_scc1 L_prod")
    e("  s_cmp_ge_u32 s36, 4")
    e("  s_cbranch_scc1 L_c1")
    compute_path(2)
    e("L_c1:")
    compute_path(1)
    e("L_prod:")
    e("  s_lshl_b32 s39, s38, 8")
    e("  s_add_u32 s24, s10, s39")
    e("  s_addc_u32 s25, s11, 0")
    e("  s_sub_u32 s26, 4194304, s39")
    e("  s_mov_b32 s27, 0x00020000")
    e("  s_lshl_b32 s3, s37, 5")
    e("  s_add_u32 s3, s3, s38")
    e("  s_lshl_b32 s39, s3, 18")
    e("  s_lshr_b32 s40, s3, 14")
    e("  s_add_u32 s16, s6, s39")
    e("  s_addc_u32 s17, s7, s40")
    e("  s_add_u32 s20, s8, s39")
    e("  s_addc_u32 s21, s9, s40")
    producer_path()
    e("L_attn_done:")
    e("  s_endpgm")

def desc(name, vgpr, sgpr=72):
    e(f".amdhsa_kernel {name}")
    e(f"  .amdhsa_next_free_vgpr {vgpr}")
    e(f"  .amdhsa_next_free_sgpr {sgpr}")
    e(f"  .amdhsa_accum_offset {(vgpr+3)//4*4}")
    e("  .amdhsa_group_segment_fixed_size 0")
    e("  .amdhsa_kernarg_size 64")
    e("  .amdhsa_user_sgpr_count 2")
    e("  .amdhsa_user_sgpr_kernarg_segment_ptr 1")
    e("  .amdhsa_system_sgpr_workgroup_id_x 1")
    e(".end_amdhsa_kernel")

out.append(HEADER)
gen_attn()
e('.section .rodata,"a"')
e(".p2align 6")
desc("standalone__gqa_block_cached__near_ridge_kernel", 256, 96)
txt = "\n".join(out) + "\n"
for ln in txt.split("\n"):
    m = re.search(r"buffer_.*offset:(\d+)", ln)
    if m: assert int(m.group(1)) < 4096, ln
open(sys.argv[1], "w").write(txt)
```

```python
import math, sys, struct, re

out = []
def e(s=""):
    out.append(s)

ARGS = sys.argv[2:]
STAMP = "stamp" in ARGS
NT = "" if "nont" in ARGS else " nt"

HEADER = """; Kernarg layout for this problem (64 bytes, ptrs only, base s[0:1]):
; @launch grid=(256,1,1) block=(512,1,1) lds=163840
.amdgcn_target "amdgcn-amd-amdhsa--gfx950"
.text
"""

def f2u(f):
    return struct.unpack("<I", struct.pack("<f", f))[0]

CSCALE = (128 ** -0.5) * math.log2(math.e)
PART_OFF = 16777216
STAMP_OFF = 67108864
FLAG_OFF = 50331648
SV = 252

INLOOP = [False]
def stamp():
    if not STAMP: return
    if INLOOP[0] and "rt" in ARGS: return
    e("  s_memrealtime s[52:53]" if "rt" in ARGS else "  s_memtime s[52:53]")
    e("  s_waitcnt lgkmcnt(0)")
    e(f"  v_mov_b32 v{SV+1}, s52")
    e(f"  v_cmp_eq_u32 s[54:55], s50, v{SV+2}")
    e("  s_nop 1")
    e(f"  v_cndmask_b32 v{SV}, v{SV}, v{SV+1}, s[54:55]")
    e("  s_add_u32 s50, s50, 1")

def stamp_out():
    if not STAMP: return
    e("  s_mul_i32 s3, s2, 9")
    e("  s_add_u32 s3, s3, s36")
    e("  s_lshl_b32 s3, s3, 8")
    e(f"  s_add_u32 s3, s3, {STAMP_OFF}")
    e("  s_add_u32 s56, s12, s3")
    e("  s_addc_u32 s57, s13, 0")
    e("  s_mov_b32 s58, 256")
    e("  s_mov_b32 s59, 0x00020000")
    e(f"  v_lshlrev_b32 v{SV+1}, 2, v{SV+2}")
    e(f"  buffer_store_dword v{SV}, v{SV+1}, s[56:59], 0 offen")

def lane_setup():
    e("  v_lshrrev_b32 v1, 6, v0")
    e("  v_and_b32 v0, 63, v0")
    e("  s_nop 0")
    e("  v_readfirstlane_b32 s36, v1")
    e("  v_and_b32 v1, 15, v0")
    e("  v_lshrrev_b32 v2, 4, v0")

def tr_addr_setup(mode="x"):
    e("  v_bfe_u32 v24, v0, 2, 2")
    e("  v_and_b32 v25, 3, v0")
    e("  v_and_b32 v26, 1, v2")
    if mode == "x":
        e("  v_lshl_add_u32 v27, v2, 4, v24")
    elif mode == "n":
        e("  v_lshl_add_u32 v27, v2, 3, v24")
    else:
        e("  v_lshl_add_u32 v27, v26, 4, v24")
        e("  v_lshrrev_b32 v3, 1, v2")
        e("  v_lshl_add_u32 v27, v3, 3, v27")
    e("  v_lshl_add_u32 v26, v26, 2, v24")
    e("  v_lshlrev_b32 v27, 8, v27")
    e("  v_lshrrev_b32 v3, 1, v25")
    e("  v_lshl_add_u32 v27, v3, 4, v27")
    e("  v_and_b32 v3, 1, v25")
    e("  v_lshl_add_u32 v27, v3, 3, v27")
    for j in range(8):
        e(f"  v_xor_b32 v3, {j}, v26")
        e(f"  v_lshl_add_u32 v{14+j}, v3, 5, v27")

MFMA = "v_mfma_f32_16x16x32_bf16"
Qr = [28, 44]
Or = [60, 92]
Sr = [124, 140]
ONES = 156
Lr = [160, 164]
F = 168
NM = [232, 236]
Tm = [(24, 25), (6, 7)]
THR = ["s60", "s62"]
FLR = ["s61", "s63"]
def xreg(tile, ks):
    pool = list(range(28, 60, 4)) + list(range(124, 168, 4)) + list(range(200, 252, 4))
    return pool[tile * 16 + ks]

def gemm_pair(T, p, hbrows, xfn=None):
    WF = F
    if xfn is None: xfn = lambda tl, kidx: xreg(tl, 4 * p + kidx)
    def reads(kidx, j):
        tile, hb = kidx >> 1, kidx & 1
        for hh in range(2):
            off = tile * 16384 + (hbrows * hb + 4 * hh) * 256
            r = WF + 4 * j + 2 * hh
            e(f"  ds_read_b64_tr_b16 v[{r}:{r+1}], v{14+j} offset:{off}")
    for j in range(8):
        reads(0, j)
    for kidx in range(4):
        for j in range(8):
            if j % 2 == 0:
                e(f"  s_waitcnt lgkmcnt({12 if kidx < 3 else 12-2*j})")
            a = WF + 4 * j
            for tl in range(T):
                xr = xfn(tl, kidx)
                d = Or[tl] + 4 * j
                e(f"  {MFMA} v[{d}:{d+3}], v[{a}:{a+3}], v[{xr}:{xr+3}], v[{d}:{d+3}]")
            if kidx < 3:
                reads(kidx + 1, j)

def softmax_ops(tl, lab, n=16):
    S = [Sr[tl] + i for i in range(n)]
    a, b = Tm[tl]
    L = []
    if n == 16:
        L.append(f"  v_max3_f32 v{a}, v{S[0]}, v{S[1]}, v{S[2]}")
        L.append(f"  v_max3_f32 v{b}, v{S[3]}, v{S[4]}, v{S[5]}")
        L.append(f"  v_max3_f32 v{a}, v{a}, v{S[6]}, v{S[7]}")
        L.append(f"  v_max3_f32 v{b}, v{b}, v{S[8]}, v{S[9]}")
        L.append(f"  v_max3_f32 v{a}, v{a}, v{S[10]}, v{S[11]}")
        L.append(f"  v_max3_f32 v{b}, v{b}, v{S[12]}, v{S[13]}")
        L.append(f"  v_max3_f32 v{a}, v{a}, v{S[14]}, v{S[15]}")
        L.append(f"  v_max_f32 v{a}, v{a}, v{b}")
    else:
        L.append(f"  v_max3_f32 v{a}, v{S[0]}, v{S[1]}, v{S[2]}")
        L.append(f"  v_max3_f32 v{b}, v{S[3]}, v{S[4]}, v{S[5]}")
        L.append(f"  v_max3_f32 v{a}, v{a}, v{S[6]}, v{S[7]}")
        L.append(f"  v_max_f32 v{a}, v{a}, v{b}")
    L.append(f"  v_cmp_lt_f32 vcc, {THR[tl]}, v{a}\n  s_cbranch_vccnz L_slow{lab}\nL_back{lab}:")
    for i in range(n):
        L.append(f"  v_exp_f32 v{S[i]}, v{S[i]}")
    L.append("  s_nop 0")
    for i in range(n // 2):
        L.append(f"  v_cvt_pk_bf16_f32 v{S[i]}, v{S[2*i]}, v{S[2*i+1]}")
    return L

def slow_path(tl, lab, n=16):
    a, b = Tm[tl]
    e(f"L_slow{lab}:")
    e(f"  v_mov_b32 v{b}, v{a}")
    e(f"  s_nop 1")
    e(f"  v_permlane32_swap_b32 v{a}, v{b}")
    e(f"  v_max_f32 v{a}, v{a}, v{b}")
    e(f"  v_mov_b32 v{b}, v{a}")
    e(f"  s_nop 1")
    e(f"  v_permlane16_swap_b32 v{a}, v{b}")
    e(f"  v_max_f32 v{a}, v{a}, v{b}")
    e(f"  v_max_f32 v{a}, {FLR[tl]}, v{a}")
    e(f"  v_sub_f32 v{b}, 0, v{a}")
    e(f"  v_min_f32 v{b}, 0, v{b}")
    e(f"  v_exp_f32 v{b}, v{b}")
    e(f"  s_mov_b32 {THR[tl]}, 0x41000000")
    e(f"  s_mov_b32 {FLR[tl]}, 0")
    for r in list(range(NM[tl], NM[tl] + 4)) + list(range(Sr[tl], Sr[tl] + n)):
        e(f"  v_sub_f32 v{r}, v{r}, v{a}")
    for r in list(range(Or[tl], Or[tl] + 32)) + list(range(Lr[tl], Lr[tl] + 4)):
        e(f"  v_mul_f32 v{r}, v{r}, v{b}")
    e(f"  s_branch L_back{lab}")

def interleave(main, fill, start=0, per=4):
    fi = 0
    for gi, g in enumerate(main):
        for s_ in g: e(s_)
        if gi >= start:
            for _ in range(per):
                if fi < len(fill):
                    e(fill[fi]); fi += 1
    while fi < len(fill):
        e(fill[fi]); fi += 1

def compute_path(T):
    P = f"c{T}"
    H = (T == 1)
    def unit_step(xfn, xreads):
        def reads(hb, j):
            for hh in range(2):
                off = (32 * hb + 4 * hh) * 256
                r = F + 4 * j + 2 * hh
                e(f"  ds_read_b64_tr_b16 v[{r}:{r+1}], v{14+j} offset:{off}")
        xreads()
        for j in range(8):
            reads(0, j)
        for hb in range(2):
            for j in range(8):
                if j % 2 == 0:
                    e(f"  s_waitcnt lgkmcnt({12 if hb == 0 else 12-2*j})")
                a_ = F + 4 * j
                for tl in range(T):
                    xr = xfn(tl, hb)
                    d = Or[tl] + 4 * j
                    e(f"  {MFMA} v[{d}:{d+3}], v[{a_}:{a_+3}], v[{xr}:{xr+3}], v[{d}:{d+3}]")
                if hb == 0:
                    reads(1, j)
    if H:
        e("  s_sub_u32 s49, s36, 4")
        e("  v_add_u32 v25, 128, v1")
        e("  v_lshlrev_b32 v25, 10, v25")
        e("  v_lshl_add_u32 v4, v2, 4, v25")
        for ks in range(16):
            r = xreg(0, ks)
            e(f"  buffer_load_dwordx4 v[{r}:{r+3}], v4, s[28:31], 0 offen offset:{64*ks}")
    else:
        e("  s_lshl_b32 s3, s36, 12")
        e("  s_add_u32 s3, s3, 16384")
        e("  v_lshrrev_b32 v24, 1, v1")
        e("  v_xor_b32 v25, v2, v24")
        e("  v_lshlrev_b32 v26, 7, v1")
        e("  v_add_u32 v26, s3, v26")
        e("  v_lshl_add_u32 v4, v25, 4, v26")
        e("  v_xor_b32 v25, 4, v25")
        e("  v_lshl_add_u32 v5, v25, 4, v26")
    tr_addr_setup("n")
    for tl in range(T):
        for r in range(Or[tl], Or[tl] + 32):
            e(f"  v_mov_b32 v{r}, 0")
    if H:
        for u in range(8):
            stamp()
            e("  s_barrier")
            stamp()
            if u == 0:
                e("  s_waitcnt vmcnt(0)")
            else:
                d = 32768 if u != 4 else -98304
                e(f"  s_mov_b32 s3, {d & 0xffffffff}")
                for j in range(8):
                    e(f"  v_add_u32 v{14+j}, s3, v{14+j}")
            unit_step(lambda tl, hb: xreg(0, 2 * u + hb), lambda: None)
    else:
        e("  s_mov_b32 s40, 0")
        e(f"L_q{P}:")
        stamp()
        e("  s_barrier")
        stamp()
        def xreads():
            for tl in range(2):
                for hb in range(2):
                    r = 124 + 8 * tl + 4 * hb
                    e(f"  ds_read_b128 v[{r}:{r+3}], v{4+hb} offset:{2048*tl}")
        unit_step(lambda tl, hb: 124 + 8 * tl + 4 * hb, xreads)
        e("  s_add_u32 s40, s40, 1")
        e("  s_cmp_eq_u32 s40, 4")
        e("  s_mov_b32 s39, 0x8000")
        e("  s_cselect_b32 s3, 0xfffe8000, s39")
        for r in [4, 5] + list(range(14, 22)):
            e(f"  v_add_u32 v{r}, s3, v{r}")
        e("  s_cmp_lt_u32 s40, 8")
        e(f"  s_cbranch_scc1 L_q{P}")
    cur = 3 * 32768 if H else 4 * 32768
    e(f"  v_mul_u32_u24 v3, {4*256}, v2")
    e(f"  v_add_u32 v3, {(cur - 131072) & 0xffffffff}, v3")
    if H:
        e("  s_lshl_b32 s3, s49, 13")
        e("  v_subrev_u32 v3, s3, v3")
        e("  s_add_u32 s3, s3, 131072")
    else:
        e("  s_mov_b32 s3, 131072")
    for j in range(8):
        e(f"  v_sub_u32 v{14+j}, v{14+j}, v3")
    e("  v_and_b32 v26, 1, v2")
    e("  v_lshrrev_b32 v27, 1, v2")
    e("  v_lshl_add_u32 v26, v26, 1, v27")
    e("  v_xor_b32 v26, v26, v1")
    for s in range(4):
        e(f"  v_xor_b32 v3, {4*s}, v26")
        e(f"  v_lshlrev_b32 v3, 4, v3")
        e(f"  v_lshl_add_u32 v{10+s}, v1, 8, v3")
        e(f"  v_add_u32 v{10+s}, s3, v{10+s}")
    e("  s_barrier")
    NF = 8 if H else 16
    def kread(idx):
        t, s = idx >> 2, idx & 3
        a = F + 4 * idx
        return f"  ds_read_b128 v[{a}:{a+3}], v{10+s} offset:{t*4096}"
    for idx in range(NF):
        e(kread(idx))
    for tl in range(T):
        for r in range(Or[tl], Or[tl] + 32):
            e(f"  v_mul_f32 v{r}, s44, v{r}")
        for j in range(8):
            a = Or[tl] + 4 * j
            e(f"  v_cvt_pk_bf16_f32 v{Qr[tl]+2*j}, v{a}, v{a+1}")
            e(f"  v_cvt_pk_bf16_f32 v{Qr[tl]+1+2*j}, v{a+2}, v{a+3}")
    for tl in range(T):
        for r in range(Or[tl], Or[tl] + 32):
            e(f"  v_mov_b32 v{r}, 0")
    for tl in range(T):
        for s in range(4):
            e(f"  v_permlane16_swap_b32 v{Qr[tl]+4*s}, v{Qr[tl]+2+4*s}")
            e(f"  v_permlane16_swap_b32 v{Qr[tl]+1+4*s}, v{Qr[tl]+3+4*s}")
    for r in range(ONES, ONES + 4):
        e(f"  v_mov_b32 v{r}, 0x3f803f80")
    for tl in range(T):
        for r in list(range(Lr[tl], Lr[tl] + 4)) + list(range(NM[tl], NM[tl] + 4)):
            e(f"  v_mov_b32 v{r}, 0")
        e(f"  s_mov_b32 {THR[tl]}, 0xff800000")
        e(f"  s_mov_b32 {FLR[tl]}, 0xff800000")
    e("  s_mov_b32 s40, 0")
    e("  s_mov_b32 s41, 131072")
    stamp()
    INLOOP[0] = True
    e(f"L_loop{P}:")
    stamp()
    def qk(tl, idx):
        t, s = idx >> 2, idx & 3
        r = F + 4 * idx
        d = Sr[tl] + 4 * t
        q = Qr[tl] + 4 * s
        c = f"v[{NM[tl]}:{NM[tl]+3}]" if s == 0 else f"v[{d}:{d+3}]"
        return f"  {MFMA} v[{d}:{d+3}], v[{r}:{r+3}], v[{q}:{q+3}], {c}"
    def vreads(idx):
        r = F + 4 * idx
        u, j = idx >> 3, idx & 7
        return [f"  ds_read_b64_tr_b16 v[{r+2*hh}:{r+2*hh+1}], v{14+j} offset:{16384 + u*8192 + hh*4096}" for hh in range(2)]
    def pv(tl, idx):
        u, j = idx >> 3, idx & 7
        a = F + 4 * idx
        d = Or[tl] + 4 * j
        p = Sr[tl] + 4 * u
        return f"  {MFMA} v[{d}:{d+3}], v[{a}:{a+3}], v[{p}:{p+3}], v[{d}:{d+3}]"
    def lacc(tl, u):
        p = Sr[tl] + 4 * u
        l = Lr[tl]
        return f"  {MFMA} v[{l}:{l+3}], v[{ONES}:{ONES+3}], v[{p}:{p+3}], v[{l}:{l+3}]"
    adv = ["  s_add_u32 s42, s41, 32768", "  s_cmp_ge_u32 s42, 163840", "  s_cselect_b32 s42, 0, s42", "  s_sub_u32 s3, s42, s41"]
    kadv = [f"  v_add_u32 v{r}, s3, v{r}" for r in range(10, 14)]
    vadv = [f"  v_add_u32 v{r}, s3, v{r}" for r in range(14, 22)]
    for s_ in adv: e(s_)
    if T == 2:
        for idx in range(16):
            if idx % 4 == 0: e(f"  s_waitcnt lgkmcnt({12-idx})")
            e(qk(0, idx))
        main = [[qk(1, idx)] + vreads(idx) for idx in range(16)]
        interleave(main, kadv + softmax_ops(0, P + "a"), start=1, per=3)
        e("  s_nop 1")
        main = []
        for idx in range(16):
            g = []
            if idx % 8 == 0: g.append(lacc(0, idx >> 3))
            if idx == 0: g.append("  s_waitcnt lgkmcnt(8)")
            if idx == 12: g.append("  s_waitcnt lgkmcnt(0)")
            g.append(pv(0, idx))
            main.append(g)
        interleave(main, vadv + softmax_ops(1, P + "b"), start=1, per=3)
        stamp()
        e("  s_barrier")
        stamp()
        for idx in range(16):
            if idx % 8 == 0: e(lacc(1, idx >> 3))
            e(pv(1, idx))
            e(kread(idx))
    else:
        for idx in range(8):
            if idx % 4 == 0: e(f"  s_waitcnt lgkmcnt({4+idx})")
            e(qk(0, idx))
            for s_ in vreads(idx): e(s_)
        for s_ in kadv: e(s_)
        e("  s_nop 3")
        for s_ in softmax_ops(0, P + "a", 8): e(s_)
        for s_ in vadv: e(s_)
        stamp()
        e("  s_waitcnt lgkmcnt(0)")
        e("  s_barrier")
        stamp()
        e(lacc(0, 0))
        for idx in range(8):
            e(pv(0, idx))
            e(kread(idx))
    e("  s_mov_b32 s41, s42")
    e("  s_add_u32 s40, s40, 1")
    e("  s_cmp_lt_u32 s40, 16")
    e(f"  s_cbranch_scc1 L_loop{P}")
    INLOOP[0] = False
    stamp()
    e("  v_lshlrev_b32 v4, 4, v0")
    e("  v_add_u32 v5, 4096, v4")
    if H:
        e("  v_add_u32 v6, 131072, v4")
        e("  s_cmp_eq_u32 s49, 0")
        e("  s_cbranch_scc1 L_mrg_r")
        e("  s_nop 4")
        for j in range(8):
            a = Or[0] + 4 * j
            e(f"  ds_write_b128 v6, v[{a}:{a+3}] offset:{1024*j}")
        e(f"  v_mov_b32 v{Lr[0]+1}, v{NM[0]}")
        e(f"  ds_write_b64 v6, v[{Lr[0]}:{Lr[0]+1}] offset:8192")
        e("  s_waitcnt lgkmcnt(0)")
        e("  s_barrier")
        e("  s_barrier")
        e("  s_barrier")
        e("  s_barrier")
        e("  s_barrier")
        stamp_out()
        e("  s_endpgm")
        e("L_mrg_r:")
        e("  s_waitcnt lgkmcnt(0)")
        e("  s_barrier")
        for j in range(8):
            a = F + 4 * j
            e(f"  ds_read_b128 v[{a}:{a+3}], v6 offset:{1024*j}")
        e(f"  ds_read_b64 v[24:25], v6 offset:8192")
        e("  s_waitcnt lgkmcnt(0)")
        e(f"  v_min_f32 v26, v25, v{NM[0]}")
        e(f"  v_sub_f32 v27, v26, v{NM[0]}")
        e(f"  v_sub_f32 v26, v26, v25")
        e(f"  v_exp_f32 v27, v27")
        e(f"  v_exp_f32 v26, v26")
        e("  s_nop 0")
        e(f"  v_mul_f32 v{Lr[0]}, v{Lr[0]}, v27")
        e(f"  v_fmac_f32 v{Lr[0]}, v24, v26")
        for r in range(32):
            e(f"  v_mul_f32 v{Or[0]+r}, v{Or[0]+r}, v27")
            e(f"  v_fmac_f32 v{Or[0]+r}, v{F+r}, v26")
    else:
        e("  s_barrier")
    if H: e("  s_mov_b32 s45, 8")
    else: e("  s_lshl_b32 s45, s36, 1")
    e("  s_mul_i32 s40, s37, 9")
    e("  s_add_u32 s40, s40, s45")
    e("  s_lshl_b32 s41, s40, 7")
    e("  s_lshl_b32 s39, s38, 2")
    e("  s_add_u32 s41, s41, s39")
    e("  s_lshl_b32 s41, s41, 10")
    e("  s_add_u32 s32, s12, s41")
    e("  s_addc_u32 s33, s13, 0")
    e(f"  s_mov_b32 s34, {131072*(T-1) + 4096}")
    e("  s_mov_b32 s35, 0x00020000")
    e("  s_mov_b32 s46, 8192")
    e("  s_mov_b32 s47, 131072")
    e("  s_mov_b32 s48, 139264")
    for tl in range(T):
        e(f"  v_rcp_f32 v{25+tl}, v{Lr[tl]}")
    e("  s_nop 0")
    for tl in range(T):
        for r in range(Or[tl], Or[tl] + 32):
            e(f"  v_mul_f32 v{r}, v{r}, v{25+tl}")
        for j in range(8):
            a = Or[tl] + 4 * j
            e(f"  v_cvt_pk_bf16_f32 v{Qr[tl]+2*j}, v{a}, v{a+1}")
            e(f"  v_cvt_pk_bf16_f32 v{Qr[tl]+1+2*j}, v{a+2}, v{a+3}")
        e("  s_nop 1")
        for s in range(4):
            e(f"  v_permlane16_swap_b32 v{Qr[tl]+4*s}, v{Qr[tl]+2+4*s}")
            e(f"  v_permlane16_swap_b32 v{Qr[tl]+1+4*s}, v{Qr[tl]+3+4*s}")
        so = "0" if tl == 0 else "s47"
        for s in range(4):
            e(f"  buffer_store_dwordx4 v[{Qr[tl]+4*s}:{Qr[tl]+3+4*s}], v4, s[32:35], {so} offen offset:{1024*s} sc1")
    stamp()
    e("  s_lshr_b32 s42, s38, 2")
    e("  s_and_b32 s43, s38, 3")
    e("  s_lshl_b32 s41, s40, 7")
    e("  s_lshl_b32 s3, s42, 4")
    e("  s_add_u32 s41, s41, s3")
    e("  s_lshl_b32 s41, s41, 10")
    e("  s_add_u32 s28, s12, s41")
    e("  s_addc_u32 s29, s13, 0")
    e(f"  s_mov_b32 s30, {131072*(T-1) + 16384}")
    e("  s_mov_b32 s31, 0x00020000")
    tr_addr_setup("o")
    e("  s_lshl_b32 s3, s43, 15")
    for j in range(8):
        e(f"  v_add_u32 v{14+j}, s3, v{14+j}")
    for tl in range(T):
        for r in range(Or[tl], Or[tl] + 32):
            e(f"  v_mov_b32 v{r}, 0")
    e("  s_lshl_b32 s3, s37, 2")
    e("  s_add_u32 s3, s3, s43")
    e("  s_lshl_b32 s41, s42, 5")
    e("  s_add_u32 s41, s41, s3")
    e("  s_mul_i32 s41, s41, 9")
    e("  s_add_u32 s41, s41, s45")
    e("  s_lshl_b32 s41, s41, 13")
    e(f"  s_add_u32 s41, s41, {PART_OFF}")
    e("  s_add_u32 s20, s12, s41")
    e("  s_addc_u32 s21, s13, 0")
    e(f"  s_mov_b32 s22, {8192*T}")
    e("  s_mov_b32 s23, 0x00020000")
    e("  s_mul_i32 s41, s3, 9")
    e("  s_add_u32 s41, s41, s45")
    e("  s_lshl_b32 s41, s41, 3")
    e("  s_add_u32 s41, s41, s42")
    e("  s_lshl_b32 s41, s41, 10")
    e(f"  s_add_u32 s41, s41, {PART_OFF}")
    e("  s_add_u32 s24, s12, s41")
    e("  s_addc_u32 s25, s13, 0")
    e(f"  s_mov_b32 s26, {7*2359296 + 8192*(T-1) + 1024}")
    e("  s_mov_b32 s27, 0x00020000")
    e("  s_mul_i32 s41, s37, 144")
    e("  s_lshl_b32 s39, s45, 4")
    e("  s_add_u32 s41, s41, s39")
    e("  s_lshl_b32 s41, s41, 10")
    e("  s_lshl_b32 s39, s43, 8")
    e("  s_add_u32 s41, s41, s39")
    e("  s_lshl_b32 s39, s42, 5")
    e("  s_add_u32 s41, s41, s39")
    e("  s_add_u32 s16, s74, s41")
    e("  s_addc_u32 s17, s75, 0")
    e("  s_sub_u32 s18, 1179648, s41")
    e("  s_mov_b32 s19, 0x00020000")
    e("  v_lshlrev_b32 v6, 10, v1")
    e("  v_lshl_add_u32 v6, v2, 3, v6")
    e("  v_add_u32 v7, 16384, v6")
    e("  s_waitcnt vmcnt(0)")
    e("  s_barrier")
    gemm_pair(T, 0, 32, lambda tl, kidx: Qr[tl] + 4 * kidx)
    e("  s_barrier")
    stamp()
    for q in range(3):
        e(f"  s_add_u32 s3, s43, {1+q}")
        e(f"  s_and_b32 s3, s3, 3")
        e(f"  s_lshl_b32 s{64+q}, s3, 12")
        e(f"  s_add_u32 s{68+q}, s{64+q}, 131072")
    for q in range(3):
        for tl in range(T):
            for kk in range(4):
                r = xreg(tl, 4 * (q + 1) + kk)
                so = f"s{64+q}" if tl == 0 else f"s{68+q}"
                e(f"  buffer_load_dwordx4 v[{r}:{r+3}], v4, s[28:31], {so} offen offset:{1024*kk} sc1")
    for q in range(3):
        e(f"  s_add_u32 s3, s43, {1+q}")
        e(f"  s_and_b32 s3, s3, 3")
        e(f"  s_cmp_eq_u32 s3, 0")
        e(f"  s_mov_b32 s39, 0x8000")
        e(f"  s_cselect_b32 s3, 0xfffe8000, s39")
        for j in range(8):
            e(f"  v_add_u32 v{14+j}, s3, v{14+j}")
        e(f"  s_waitcnt vmcnt({4*T*(2-q)})")
        gemm_pair(T, q + 1, 32)
    e("  s_nop 7")
    for tl in range(T):
        so = "0" if tl == 0 else "s46"
        for j in range(8):
            a = Or[tl] + 4 * j
            e(f"  buffer_store_dwordx4 v[{a}:{a+3}], v{4 + (j>>2)}, s[20:23], {so} offen offset:{1024*(j&3)} sc1")
    e("  s_waitcnt vmcnt(0)")
    stamp()
    e("  s_barrier")
    e("  s_barrier")
    stamp()
    for tl in range(T):
        for k2 in range(8):
            e(f"  s_mov_b32 s3, {k2*2359296 + tl*8192}")
            r = 124 + 32 * tl + 4 * k2
            e(f"  buffer_load_dwordx4 v[{r}:{r+3}], v4, s[24:27], s3 offen sc1")
    for tl in range(T):
        base = 124 + 32 * tl
        for k2 in range(1, 8):
            e(f"  s_waitcnt vmcnt({8*(T-1-tl) + 7-k2})")
            for r in range(4):
                e(f"  v_add_f32 v{base+r}, v{base+r}, v{base+4*k2+r}")
        e(f"  v_cvt_pk_bf16_f32 v{base}, v{base}, v{base+1}")
        e(f"  v_cvt_pk_bf16_f32 v{base+1}, v{base+2}, v{base+3}")
        e(f"  buffer_store_dwordx2 v[{base}:{base+1}], v{6+tl}, s[16:19], 0 offen")
    stamp()
    stamp_out()
    e("  s_endpgm")
    for tl in range(T):
        slow_path(tl, P + "ab"[tl], 8 if H else 16)

def producer_path():
    if "prio" in ARGS: e("  s_setprio 3")
    e("  s_sub_u32 s45, s36, 6")
    e("  s_lshl_b32 s46, s45, 14")
    e("  s_cmp_eq_u32 s45, 0")
    e("  s_cselect_b32 s60, s16, s20")
    e("  s_cselect_b32 s61, s17, s21")
    e("  s_mov_b32 s62, 262144")
    e("  s_mov_b32 s63, 0x00020000")
    for n in range(4):
        e(f"  v_add_u32 v24, {4*n}, v2")
        e(f"  v_add_u32 v25, {4*(n&1)}, v2")
        e(f"  v_lshlrev_b32 v25, 1, v25")
        e(f"  v_cndmask_b32 v24, v25, v24, s[48:49]")
        e(f"  v_xor_b32 v24, v24, v1")
        e(f"  v_lshlrev_b32 v24, 4, v24")
        e(f"  v_lshl_add_u32 v{4+n}, v2, 8, v24")
    for b in range(2):
        e(f"  v_add_u32 v24, {4*b}, v2")
        e(f"  v_lshlrev_b32 v24, 1, v24")
        e(f"  v_xor_b32 v24, v24, v1")
        e(f"  v_lshlrev_b32 v24, 4, v24")
        e(f"  v_lshl_add_u32 v{8+b}, v2, 13, v24")
        e(f"  v_lshl_add_u32 v{10+b}, v2, 10, v24")
    e("  s_lshl_b32 s47, s45, 19")
    e(f"  s_add_u32 s88, s12, {FLAG_OFF}")
    e("  s_addc_u32 s89, s13, 0")
    e("  s_mov_b32 s90, 65536")
    e("  s_mov_b32 s91, 0x00020000")
    e("  s_lshl_b32 s3, s2, 8")
    e("  v_mov_b32 v26, s3")
    e("  v_lshrrev_b32 v24, 3, v0")
    e("  v_and_b32 v25, 7, v0")
    for b_ in range(2):
        e(f"  v_add_u32 v31, {4*b_}, v2")
        e(f"  v_xor_b32 v31, v31, v25")
        e(f"  v_lshlrev_b32 v31, 4, v31")
        e(f"  v_lshl_add_u32 v{12+b_}, v24, 10, v31")
    uidc = [0]
    def issue_U(u, phys):
        uidc[0] += 1
        e(f"  s_add_u32 s64, s46, {phys*32768}")
        e("  s_cmp_eq_u32 s45, 0")
        e(f"  s_cbranch_scc0 L_ux{uidc[0]}")
        e(f"  s_mov_b32 s65, {u*524288}")
        for n in range(16):
            e(f"  s_mov_b32 m0, s64")
            e(f"  s_add_u32 s64, s64, 1024")
            e(f"  buffer_load_dwordx4 v{8 + ((n>>1)&1)}, s[24:27], s65 offen lds")
            if n < 15:
                e(f"  s_add_u32 s65, s65, 32768")
        e(f"  s_branch L_uj{uidc[0]}")
        e(f"L_ux{uidc[0]}:")
        e(f"  s_mov_b32 s65, {u*128}")
        for n in range(16):
            e(f"  s_mov_b32 m0, s64")
            e(f"  s_add_u32 s64, s64, 1024")
            e(f"  buffer_load_dwordx4 v{12 + (n&1)}, s[28:31], s65 offen lds")
            if n < 15:
                e(f"  s_add_u32 s65, s65, 8192")
        e(f"L_uj{uidc[0]}:")
    def issue_KV(slot, soff):
        e(f"  s_add_u32 s64, s46, {slot}")
        e(f"  s_mov_b32 s65, {soff}")
        for q in range(4):
            e(f"  s_mov_b32 m0, s64")
            e(f"  s_add_u32 s64, s64, 4096")
            for n in range(4):
                e(f"  buffer_load_dwordx4 v{4+n}, s[60:63], s65 offen offset:{1024*n}{NT} lds")
            if q < 3:
                e(f"  s_add_u32 s65, s65, 4096")
    issue_U(0, 0)
    issue_U(1, 1)
    EARLY = "early" in ARGS
    if not EARLY: issue_U(2, 2)
    waits = [16 if EARLY else 32, 48, 48, 48, 32, 32, 32, 32]
    for u in range(8):
        stamp()
        e(f"  s_waitcnt vmcnt({waits[u]})")
        e("  s_barrier")
        stamp()
        if u == 0:
            if EARLY: issue_U(2, 2)
            issue_U(3, 3)
            issue_KV(4 * 32768, 0)
        elif u <= 4:
            issue_U(u + 3, u - 1)
        else:
            issue_KV((u - 5) * 32768, (u - 4) * 16384)
    e("  s_barrier")
    issue_KV(3*32768, 4*16384)
    e("  s_mov_b32 s84, s76")
    e("  s_mov_b32 s85, s77")
    e("  s_mov_b32 s86, 256")
    e("  s_mov_b32 s87, 0x00020000")
    e("  s_cmp_lg_u32 s36, 6")
    e("  s_cbranch_scc1 L_notok")
    e("  s_memrealtime s[92:93]")
    e("  s_waitcnt lgkmcnt(0)")
    e("  s_or_b32 s92, s92, 1")
    e("  v_mov_b32 v32, s92")
    e("  v_mov_b32 v33, 0")
    e("  v_mov_b32 v34, 252")
    e("  s_mov_b64 exec, 1")
    e("  buffer_atomic_cmpswap v[32:33], v34, s[84:87], 0 offen sc0 sc1")
    e("  s_mov_b64 exec, -1")
    e("L_notok:")
    e("  s_mov_b32 s40, 0")
    e("  s_mov_b32 s41, 131072")
    e(f"  s_mov_b32 s43, {5*16384}")
    e("  s_lshr_b32 s66, s38, 2")
    e("  s_and_b32 s67, s38, 3")
    e("  s_lshl_b32 s3, s66, 19")
    e("  s_lshl_b32 s64, s67, 8")
    e("  s_add_u32 s3, s3, s64")
    e("  s_add_u32 s80, s72, s3")
    e("  s_addc_u32 s81, s73, 0")
    e("  s_sub_u32 s82, 4194304, s3")
    e("  s_mov_b32 s83, 0x00020000")
    INLOOP[0] = True
    e("L_loopP:")
    stamp()
    e("  s_waitcnt vmcnt(48)")
    stamp()
    e("  s_barrier")
    stamp()
    issue_KV("s41", "s43")
    e("  s_add_u32 s41, s41, 32768")
    e("  s_cmp_ge_u32 s41, 163840")
    e("  s_cselect_b32 s41, 0, s41")
    e("  s_add_u32 s43, s43, 16384")
    e("  s_add_u32 s40, s40, 1")
    e("  s_cmp_lt_u32 s40, 11")
    e("  s_cbranch_scc1 L_loopP")
    INLOOP[0] = False
    e("  s_lshl_b32 s43, s45, 16")
    e("  s_mov_b32 s40, 0")
    e("L_loopW:")
    e("  s_waitcnt vmcnt(48)")
    e("  s_barrier")
    e("  s_add_u32 s64, s46, s41")
    e("  s_mov_b32 s65, s43")
    for n in range(16):
        e(f"  s_mov_b32 m0, s64")
        e(f"  s_add_u32 s64, s64, 1024")
        e(f"  buffer_load_dwordx4 v{10 + ((n>>2)&1)}, s[80:83], s65 offen lds")
        if n < 15:
            e(f"  s_add_u32 s65, s65, 4096")
    e("  s_add_u32 s41, s41, 32768")
    e("  s_add_u32 s43, s43, 131072")
    e("  s_add_u32 s40, s40, 1")
    e("  s_cmp_lt_u32 s40, 4")
    e("  s_cbranch_scc1 L_loopW")
    e("  s_barrier")
    e("  s_mov_b32 s84, s76")
    e("  s_mov_b32 s85, s77")
    e("  s_mov_b32 s86, 256")
    e("  s_mov_b32 s87, 0x00020000")
    e("  s_lshl_b32 s3, s37, 3")
    e("  s_add_u32 s3, s3, s66")
    e("  s_lshl_b32 s3, s3, 2")
    e("  v_mov_b32 v21, s3")
    e("  s_lshl_b32 s3, s37, 2")
    e("  s_add_u32 s3, s3, s67")
    e("  s_lshl_b32 s3, s3, 2")
    e("  v_mov_b32 v23, s3")
    e("  v_mov_b32 v20, 1")
    e("  v_mov_b32 v22, 0x10000")
    e("  s_barrier")
    e("  s_waitcnt vmcnt(0)")
    stamp()
    e("  s_barrier")
    stamp()
    e("  s_lshl_b32 s3, s37, 5")
    e("  s_add_u32 s3, s3, s66")
    e("  v_lshl_add_u32 v28, v0, 3, s3")
    e("  v_lshlrev_b32 v28, 8, v28")
    e("  s_lshl_b32 s3, s37, 2")
    e("  s_add_u32 s3, s3, s67")
    e("  s_lshl_b32 s3, s3, 3")
    e("  v_add_u32 v29, s3, v0")
    e("  v_lshlrev_b32 v29, 8, v29")
    e("  v_readfirstlane_b32 s3, v32")
    e("  s_cmp_eq_u32 s3, 0")
    e("  s_cselect_b32 s92, s92, s3")
    e("  s_not_b32 s93, s92")
    e("  v_mov_b32 v30, s92")
    e("  v_mov_b32 v31, s93")
    def sync(lab, vdata, vaddr, shift, target, vmem, foff):
        e("  s_cmp_lg_u32 s36, 6")
        e(f"  s_cbranch_scc1 L_sd{lab}")
        e("  s_mov_b64 exec, 1")
        e(f"  buffer_store_dwordx2 v[30:31], v26, s[88:91], 0 offen offset:{foff} sc1")
        e(f"  s_mov_b64 exec, {(1<<target)-1}")
        e("  s_mov_b32 s40, 0")
        e(f"L_sp{lab}:")
        e(f"  buffer_load_dwordx2 v[24:25], v{vmem}, s[88:91], 0 offen offset:{foff} sc1")
        e("  s_waitcnt vmcnt(0)")
        e("  v_cmp_eq_u32 vcc, s92, v24")
        e("  v_cmp_eq_u32 s[94:95], s93, v25")
        e("  s_and_b64 vcc, vcc, s[94:95]")
        e(f"  s_cmp_eq_u64 vcc, exec")
        e(f"  s_cbranch_scc1 L_sx{lab}")
        e("  s_add_u32 s40, s40, 1")
        e("  s_cmp_lt_u32 s40, 0x10000")
        e(f"  s_cbranch_scc1 L_sp{lab}")
        e(f"L_sx{lab}:")
        e("  s_mov_b64 exec, -1")
        e(f"L_sd{lab}:")
    sync("1", 20, 21, 0, 4, 28, 0)
    stamp()
    e("  s_barrier")
    e("  s_barrier")
    stamp()
    sync("2", 22, 23, 16, 8, 29, 128)
    stamp()
    e("  s_barrier")
    stamp()
    stamp_out()
    e("  s_endpgm")

def gen_attn():
    e(".globl standalone__gqa_block_cached__near_ridge_kernel")
    e(".p2align 8")
    e(".type standalone__gqa_block_cached__near_ridge_kernel,@function")
    e("standalone__gqa_block_cached__near_ridge_kernel:")
    e("  s_cmp_ge_u32 s2, 256")
    e("  s_cbranch_scc1 L_attn_done")
    e("  s_load_dwordx8 s[4:11], s[0:1], 0")
    e("  s_load_dwordx2 s[12:13], s[0:1], 56")
    e("  s_load_dwordx8 s[72:79], s[0:1], 32")
    if STAMP:
        e("  s_mov_b32 s50, 0")
        e(f"  v_mov_b32 v{SV}, 0")
        e(f"  v_and_b32 v{SV+2}, 63, v0")
        stamp()
    lane_setup()
    e("  s_and_b32 s3, s2, 7")
    e("  s_lshr_b32 s37, s2, 3")
    e("  s_and_b32 s38, s37, 3")
    e("  s_lshl_b32 s3, s3, 2")
    e("  s_add_u32 s38, s38, s3")
    e("  s_lshr_b32 s37, s37, 2")
    e(f"  s_mov_b32 s44, 0x{f2u(CSCALE):08x}")
    e("  s_cmp_eq_u32 s36, 6")
    e("  s_cselect_b64 s[48:49], -1, 0")
    e("  s_waitcnt lgkmcnt(0)")
    e("  s_mul_i32 s40, s37, 147456")
    e("  s_add_u32 s28, s4, s40")
    e("  s_addc_u32 s29, s5, 0")
    e("  s_mov_b32 s30, 147456")
    e("  s_mov_b32 s31, 0x00020000")
    e("  s_cmp_ge_u32 s36, 6")
    e("  s_cbranch_scc1 L_prod")
    e("  s_cmp_ge_u32 s36, 4")
    e("  s_cbranch_scc1 L_c1")
    compute_path(2)
    e("L_c1:")
    compute_path(1)
    e("L_prod:")
    e("  s_lshl_b32 s39, s38, 8")
    e("  s_add_u32 s24, s10, s39")
    e("  s_addc_u32 s25, s11, 0")
    e("  s_sub_u32 s26, 4194304, s39")
    e("  s_mov_b32 s27, 0x00020000")
    e("  s_lshl_b32 s3, s37, 5")
    e("  s_add_u32 s3, s3, s38")
    e("  s_lshl_b32 s39, s3, 18")
    e("  s_lshr_b32 s40, s3, 14")
    e("  s_add_u32 s16, s6, s39")
    e("  s_addc_u32 s17, s7, s40")
    e("  s_add_u32 s20, s8, s39")
    e("  s_addc_u32 s21, s9, s40")
    producer_path()
    e("L_attn_done:")
    e("  s_endpgm")

def desc(name, vgpr, sgpr=72):
    e(f".amdhsa_kernel {name}")
    e(f"  .amdhsa_next_free_vgpr {vgpr}")
    e(f"  .amdhsa_next_free_sgpr {sgpr}")
    e(f"  .amdhsa_accum_offset {(vgpr+3)//4*4}")
    e("  .amdhsa_group_segment_fixed_size 0")
    e("  .amdhsa_kernarg_size 64")
    e("  .amdhsa_user_sgpr_count 2")
    e("  .amdhsa_user_sgpr_kernarg_segment_ptr 1")
    e("  .amdhsa_system_sgpr_workgroup_id_x 1")
    e(".end_amdhsa_kernel")

out.append(HEADER)
gen_attn()
e('.section .rodata,"a"')
e(".p2align 6")
desc("standalone__gqa_block_cached__near_ridge_kernel", 256, 100)
txt = "\n".join(out) + "\n"
for ln in txt.split("\n"):
    m = re.search(r"buffer_.*offset:(\d+)", ln)
    if m: assert int(m.group(1)) < 4096, ln
open(sys.argv[1], "w").write(txt)
```

```python
import math, sys, struct, re

out = []
def e(s=""):
    out.append(s)

ARGS = sys.argv[2:]
STAMP = "stamp" in ARGS
NT = "" if "nont" in ARGS else " nt"

HEADER = """; Kernarg layout for this problem (64 bytes, ptrs only, base s[0:1]):
; @launch grid=(256,1,1) block=(512,1,1) lds=163840
.amdgcn_target "amdgcn-amd-amdhsa--gfx950"
.text
"""

def f2u(f):
    return struct.unpack("<I", struct.pack("<f", f))[0]

CSCALE = (128 ** -0.5) * math.log2(math.e)
PART_OFF = 16777216
STAMP_OFF = 67108864
FLAG_OFF = 50331648
SV = 252

INLOOP = [False]
def stamp():
    if not STAMP: return
    if INLOOP[0] and "rt" in ARGS: return
    e("  s_memrealtime s[52:53]" if "rt" in ARGS else "  s_memtime s[52:53]")
    e("  s_waitcnt lgkmcnt(0)")
    e(f"  v_mov_b32 v{SV+1}, s52")
    e(f"  v_cmp_eq_u32 s[54:55], s50, v{SV+2}")
    e("  s_nop 1")
    e(f"  v_cndmask_b32 v{SV}, v{SV}, v{SV+1}, s[54:55]")
    e("  s_add_u32 s50, s50, 1")

def stamp_out():
    if not STAMP: return
    e("  s_mul_i32 s3, s2, 9")
    e("  s_add_u32 s3, s3, s36")
    e("  s_lshl_b32 s3, s3, 8")
    e(f"  s_add_u32 s3, s3, {STAMP_OFF}")
    e("  s_add_u32 s56, s12, s3")
    e("  s_addc_u32 s57, s13, 0")
    e("  s_mov_b32 s58, 256")
    e("  s_mov_b32 s59, 0x00020000")
    e(f"  v_lshlrev_b32 v{SV+1}, 2, v{SV+2}")
    e(f"  buffer_store_dword v{SV}, v{SV+1}, s[56:59], 0 offen")

def lane_setup():
    e("  v_lshrrev_b32 v1, 6, v0")
    e("  v_and_b32 v0, 63, v0")
    e("  s_nop 0")
    e("  v_readfirstlane_b32 s36, v1")
    e("  v_and_b32 v1, 15, v0")
    e("  v_lshrrev_b32 v2, 4, v0")

def tr_addr_setup(mode="x"):
    e("  v_bfe_u32 v24, v0, 2, 2")
    e("  v_and_b32 v25, 3, v0")
    e("  v_and_b32 v26, 1, v2")
    if mode == "x":
        e("  v_lshl_add_u32 v27, v2, 4, v24")
    elif mode == "n":
        e("  v_lshl_add_u32 v27, v2, 3, v24")
    else:
        e("  v_lshl_add_u32 v27, v26, 4, v24")
        e("  v_lshrrev_b32 v3, 1, v2")
        e("  v_lshl_add_u32 v27, v3, 3, v27")
    e("  v_lshl_add_u32 v26, v26, 2, v24")
    e("  v_lshlrev_b32 v27, 8, v27")
    e("  v_lshrrev_b32 v3, 1, v25")
    e("  v_lshl_add_u32 v27, v3, 4, v27")
    e("  v_and_b32 v3, 1, v25")
    e("  v_lshl_add_u32 v27, v3, 3, v27")
    for j in range(8):
        e(f"  v_xor_b32 v3, {j}, v26")
        e(f"  v_lshl_add_u32 v{14+j}, v3, 5, v27")

MFMA = "v_mfma_f32_16x16x32_bf16"
Qr = [28, 44]
Or = [60, 92]
Sr = [124, 140]
ONES = 156
Lr = [160, 164]
F = 168
NM = [232, 236]
Tm = [(24, 25), (6, 7)]
THR = ["s60", "s62"]
FLR = ["s61", "s63"]
def xreg(tile, ks):
    pool = list(range(28, 60, 4)) + list(range(124, 168, 4)) + list(range(200, 252, 4))
    return pool[tile * 16 + ks]

def gemm_pair(T, p, hbrows, xfn=None):
    WF = F
    if xfn is None: xfn = lambda tl, kidx: xreg(tl, 4 * p + kidx)
    def reads(kidx, j):
        tile, hb = kidx >> 1, kidx & 1
        for hh in range(2):
            off = tile * 16384 + (hbrows * hb + 4 * hh) * 256
            r = WF + 4 * j + 2 * hh
            e(f"  ds_read_b64_tr_b16 v[{r}:{r+1}], v{14+j} offset:{off}")
    for j in range(8):
        reads(0, j)
    for kidx in range(4):
        for j in range(8):
            if j % 2 == 0:
                e(f"  s_waitcnt lgkmcnt({12 if kidx < 3 else 12-2*j})")
            a = WF + 4 * j
            for tl in range(T):
                xr = xfn(tl, kidx)
                d = Or[tl] + 4 * j
                e(f"  {MFMA} v[{d}:{d+3}], v[{a}:{a+3}], v[{xr}:{xr+3}], v[{d}:{d+3}]")
            if kidx < 3:
                reads(kidx + 1, j)

def softmax_ops(tl, lab, n=16):
    S = [Sr[tl] + i for i in range(n)]
    a, b = Tm[tl]
    L = []
    if n == 16:
        L.append(f"  v_max3_f32 v{a}, v{S[0]}, v{S[1]}, v{S[2]}")
        L.append(f"  v_max3_f32 v{b}, v{S[3]}, v{S[4]}, v{S[5]}")
        L.append(f"  v_max3_f32 v{a}, v{a}, v{S[6]}, v{S[7]}")
        L.append(f"  v_max3_f32 v{b}, v{b}, v{S[8]}, v{S[9]}")
        L.append(f"  v_max3_f32 v{a}, v{a}, v{S[10]}, v{S[11]}")
        L.append(f"  v_max3_f32 v{b}, v{b}, v{S[12]}, v{S[13]}")
        L.append(f"  v_max3_f32 v{a}, v{a}, v{S[14]}, v{S[15]}")
        L.append(f"  v_max_f32 v{a}, v{a}, v{b}")
    else:
        L.append(f"  v_max3_f32 v{a}, v{S[0]}, v{S[1]}, v{S[2]}")
        L.append(f"  v_max3_f32 v{b}, v{S[3]}, v{S[4]}, v{S[5]}")
        L.append(f"  v_max3_f32 v{a}, v{a}, v{S[6]}, v{S[7]}")
        L.append(f"  v_max_f32 v{a}, v{a}, v{b}")
    L.append(f"  v_cmp_lt_f32 vcc, {THR[tl]}, v{a}\n  s_cbranch_vccnz L_slow{lab}\nL_back{lab}:")
    for i in range(n):
        L.append(f"  v_exp_f32 v{S[i]}, v{S[i]}")
    L.append("  s_nop 0")
    for i in range(n // 2):
        L.append(f"  v_cvt_pk_bf16_f32 v{S[i]}, v{S[2*i]}, v{S[2*i+1]}")
    return L

def slow_path(tl, lab, n=16):
    a, b = Tm[tl]
    e(f"L_slow{lab}:")
    e(f"  v_mov_b32 v{b}, v{a}")
    e(f"  s_nop 1")
    e(f"  v_permlane32_swap_b32 v{a}, v{b}")
    e(f"  v_max_f32 v{a}, v{a}, v{b}")
    e(f"  v_mov_b32 v{b}, v{a}")
    e(f"  s_nop 1")
    e(f"  v_permlane16_swap_b32 v{a}, v{b}")
    e(f"  v_max_f32 v{a}, v{a}, v{b}")
    e(f"  v_max_f32 v{a}, {FLR[tl]}, v{a}")
    e(f"  v_sub_f32 v{b}, 0, v{a}")
    e(f"  v_min_f32 v{b}, 0, v{b}")
    e(f"  v_exp_f32 v{b}, v{b}")
    e(f"  s_mov_b32 {THR[tl]}, 0x41000000")
    e(f"  s_mov_b32 {FLR[tl]}, 0")
    for r in list(range(NM[tl], NM[tl] + 4)) + list(range(Sr[tl], Sr[tl] + n)):
        e(f"  v_sub_f32 v{r}, v{r}, v{a}")
    for r in list(range(Or[tl], Or[tl] + 32)) + list(range(Lr[tl], Lr[tl] + 4)):
        e(f"  v_mul_f32 v{r}, v{r}, v{b}")
    e(f"  s_branch L_back{lab}")

def interleave(main, fill, start=0, per=4):
    fi = 0
    for gi, g in enumerate(main):
        for s_ in g: e(s_)
        if gi >= start:
            for _ in range(per):
                if fi < len(fill):
                    e(fill[fi]); fi += 1
    while fi < len(fill):
        e(fill[fi]); fi += 1

def compute_path(T):
    P = f"c{T}"
    H = (T == 1)
    def unit_step(xfn, xreads):
        def reads(hb, j):
            for hh in range(2):
                off = (32 * hb + 4 * hh) * 256
                r = F + 4 * j + 2 * hh
                e(f"  ds_read_b64_tr_b16 v[{r}:{r+1}], v{14+j} offset:{off}")
        xreads()
        for j in range(8):
            reads(0, j)
        for hb in range(2):
            for j in range(8):
                if j % 2 == 0:
                    e(f"  s_waitcnt lgkmcnt({12 if hb == 0 else 12-2*j})")
                a_ = F + 4 * j
                for tl in range(T):
                    xr = xfn(tl, hb)
                    d = Or[tl] + 4 * j
                    e(f"  {MFMA} v[{d}:{d+3}], v[{a_}:{a_+3}], v[{xr}:{xr+3}], v[{d}:{d+3}]")
                if hb == 0:
                    reads(1, j)
    if H:
        e("  s_sub_u32 s49, s36, 4")
        e("  v_add_u32 v25, 128, v1")
        e("  v_lshlrev_b32 v25, 10, v25")
        e("  v_lshl_add_u32 v4, v2, 4, v25")
        for ks in range(16):
            r = xreg(0, ks)
            e(f"  buffer_load_dwordx4 v[{r}:{r+3}], v4, s[28:31], 0 offen offset:{64*ks}")
    else:
        e("  s_lshl_b32 s3, s36, 12")
        e("  s_add_u32 s3, s3, 16384")
        e("  v_lshrrev_b32 v24, 1, v1")
        e("  v_xor_b32 v25, v2, v24")
        e("  v_lshlrev_b32 v26, 7, v1")
        e("  v_add_u32 v26, s3, v26")
        e("  v_lshl_add_u32 v4, v25, 4, v26")
        e("  v_xor_b32 v25, 4, v25")
        e("  v_lshl_add_u32 v5, v25, 4, v26")
    tr_addr_setup("n")
    for tl in range(T):
        for r in range(Or[tl], Or[tl] + 32):
            e(f"  v_mov_b32 v{r}, 0")
    if H:
        for u in range(8):
            stamp()
            e("  s_barrier")
            stamp()
            if u == 0:
                e("  s_waitcnt vmcnt(0)")
            else:
                d = 32768 if u != 4 else -98304
                e(f"  s_mov_b32 s3, {d & 0xffffffff}")
                for j in range(8):
                    e(f"  v_add_u32 v{14+j}, s3, v{14+j}")
            unit_step(lambda tl, hb: xreg(0, 2 * u + hb), lambda: None)
    else:
        e("  s_mov_b32 s40, 0")
        e(f"L_q{P}:")
        stamp()
        e("  s_barrier")
        stamp()
        def xreads():
            for tl in range(2):
                for hb in range(2):
                    r = 124 + 8 * tl + 4 * hb
                    e(f"  ds_read_b128 v[{r}:{r+3}], v{4+hb} offset:{2048*tl}")
        unit_step(lambda tl, hb: 124 + 8 * tl + 4 * hb, xreads)
        e("  s_add_u32 s40, s40, 1")
        e("  s_cmp_eq_u32 s40, 4")
        e("  s_mov_b32 s39, 0x8000")
        e("  s_cselect_b32 s3, 0xfffe8000, s39")
        for r in [4, 5] + list(range(14, 22)):
            e(f"  v_add_u32 v{r}, s3, v{r}")
        e("  s_cmp_lt_u32 s40, 8")
        e(f"  s_cbranch_scc1 L_q{P}")
    cur = 3 * 32768 if H else 4 * 32768
    e(f"  v_mul_u32_u24 v3, {4*256}, v2")
    e(f"  v_add_u32 v3, {(cur - 131072) & 0xffffffff}, v3")
    if H:
        e("  s_lshl_b32 s3, s49, 13")
        e("  v_subrev_u32 v3, s3, v3")
        e("  s_add_u32 s3, s3, 131072")
    else:
        e("  s_mov_b32 s3, 131072")
    for j in range(8):
        e(f"  v_sub_u32 v{14+j}, v{14+j}, v3")
    e("  v_and_b32 v26, 1, v2")
    e("  v_lshrrev_b32 v27, 1, v2")
    e("  v_lshl_add_u32 v26, v26, 1, v27")
    e("  v_xor_b32 v26, v26, v1")
    for s in range(4):
        e(f"  v_xor_b32 v3, {4*s}, v26")
        e(f"  v_lshlrev_b32 v3, 4, v3")
        e(f"  v_lshl_add_u32 v{10+s}, v1, 8, v3")
        e(f"  v_add_u32 v{10+s}, s3, v{10+s}")
    e("  s_barrier")
    NF = 8 if H else 16
    def kread(idx):
        t, s = idx >> 2, idx & 3
        a = F + 4 * idx
        return f"  ds_read_b128 v[{a}:{a+3}], v{10+s} offset:{t*4096}"
    for idx in range(NF):
        e(kread(idx))
    for tl in range(T):
        for r in range(Or[tl], Or[tl] + 32):
            e(f"  v_mul_f32 v{r}, s44, v{r}")
        for j in range(8):
            a = Or[tl] + 4 * j
            e(f"  v_cvt_pk_bf16_f32 v{Qr[tl]+2*j}, v{a}, v{a+1}")
            e(f"  v_cvt_pk_bf16_f32 v{Qr[tl]+1+2*j}, v{a+2}, v{a+3}")
    for tl in range(T):
        for r in range(Or[tl], Or[tl] + 32):
            e(f"  v_mov_b32 v{r}, 0")
    for tl in range(T):
        for s in range(4):
            e(f"  v_permlane16_swap_b32 v{Qr[tl]+4*s}, v{Qr[tl]+2+4*s}")
            e(f"  v_permlane16_swap_b32 v{Qr[tl]+1+4*s}, v{Qr[tl]+3+4*s}")
    for r in range(ONES, ONES + 4):
        e(f"  v_mov_b32 v{r}, 0x3f803f80")
    for tl in range(T):
        for r in list(range(Lr[tl], Lr[tl] + 4)) + list(range(NM[tl], NM[tl] + 4)):
            e(f"  v_mov_b32 v{r}, 0")
        e(f"  s_mov_b32 {THR[tl]}, 0xff800000")
        e(f"  s_mov_b32 {FLR[tl]}, 0xff800000")
    e("  s_mov_b32 s40, 0")
    e("  s_mov_b32 s41, 131072")
    stamp()
    INLOOP[0] = True
    e(f"L_loop{P}:")
    stamp()
    def qk(tl, idx):
        t, s = idx >> 2, idx & 3
        r = F + 4 * idx
        d = Sr[tl] + 4 * t
        q = Qr[tl] + 4 * s
        c = f"v[{NM[tl]}:{NM[tl]+3}]" if s == 0 else f"v[{d}:{d+3}]"
        return f"  {MFMA} v[{d}:{d+3}], v[{r}:{r+3}], v[{q}:{q+3}], {c}"
    def vreads(idx):
        r = F + 4 * idx
        u, j = idx >> 3, idx & 7
        return [f"  ds_read_b64_tr_b16 v[{r+2*hh}:{r+2*hh+1}], v{14+j} offset:{16384 + u*8192 + hh*4096}" for hh in range(2)]
    def pv(tl, idx):
        u, j = idx >> 3, idx & 7
        a = F + 4 * idx
        d = Or[tl] + 4 * j
        p = Sr[tl] + 4 * u
        return f"  {MFMA} v[{d}:{d+3}], v[{a}:{a+3}], v[{p}:{p+3}], v[{d}:{d+3}]"
    def lacc(tl, u):
        p = Sr[tl] + 4 * u
        l = Lr[tl]
        return f"  {MFMA} v[{l}:{l+3}], v[{ONES}:{ONES+3}], v[{p}:{p+3}], v[{l}:{l+3}]"
    adv = ["  s_add_u32 s42, s41, 32768", "  s_cmp_ge_u32 s42, 163840", "  s_cselect_b32 s42, 0, s42", "  s_sub_u32 s3, s42, s41"]
    kadv = [f"  v_add_u32 v{r}, s3, v{r}" for r in range(10, 14)]
    vadv = [f"  v_add_u32 v{r}, s3, v{r}" for r in range(14, 22)]
    for s_ in adv: e(s_)
    if T == 2:
        for idx in range(16):
            if idx % 4 == 0: e(f"  s_waitcnt lgkmcnt({12-idx})")
            e(qk(0, idx))
        main = [[qk(1, idx)] + vreads(idx) for idx in range(16)]
        interleave(main, kadv + softmax_ops(0, P + "a"), start=1, per=3)
        e("  s_nop 1")
        main = []
        for idx in range(16):
            g = []
            if idx % 8 == 0: g.append(lacc(0, idx >> 3))
            if idx == 0: g.append("  s_waitcnt lgkmcnt(8)")
            if idx == 12: g.append("  s_waitcnt lgkmcnt(0)")
            g.append(pv(0, idx))
            main.append(g)
        interleave(main, vadv + softmax_ops(1, P + "b"), start=1, per=3)
        stamp()
        e("  s_barrier")
        stamp()
        for idx in range(16):
            if idx % 8 == 0: e(lacc(1, idx >> 3))
            e(pv(1, idx))
            e(kread(idx))
    else:
        for idx in range(8):
            if idx % 4 == 0: e(f"  s_waitcnt lgkmcnt({4+idx})")
            e(qk(0, idx))
            for s_ in vreads(idx): e(s_)
        for s_ in kadv: e(s_)
        e("  s_nop 3")
        for s_ in softmax_ops(0, P + "a", 8): e(s_)
        for s_ in vadv: e(s_)
        stamp()
        e("  s_waitcnt lgkmcnt(0)")
        e("  s_barrier")
        stamp()
        e(lacc(0, 0))
        for idx in range(8):
            e(pv(0, idx))
            e(kread(idx))
    e("  s_mov_b32 s41, s42")
    e("  s_add_u32 s40, s40, 1")
    e("  s_cmp_lt_u32 s40, 16")
    e(f"  s_cbranch_scc1 L_loop{P}")
    INLOOP[0] = False
    stamp()
    e("  v_lshlrev_b32 v4, 4, v0")
    e("  v_add_u32 v5, 4096, v4")
    if H:
        e("  v_add_u32 v6, 131072, v4")
        e("  s_cmp_eq_u32 s49, 0")
        e("  s_cbranch_scc1 L_mrg_r")
        e("  s_nop 4")
        for j in range(8):
            a = Or[0] + 4 * j
            e(f"  ds_write_b128 v6, v[{a}:{a+3}] offset:{1024*j}")
        e(f"  v_mov_b32 v{Lr[0]+1}, v{NM[0]}")
        e(f"  ds_write_b64 v6, v[{Lr[0]}:{Lr[0]+1}] offset:8192")
        e("  s_waitcnt lgkmcnt(0)")
        e("  s_barrier")
        e("  s_barrier")
        e("  s_barrier")
        e("  s_barrier")
        e("  s_barrier")
        stamp_out()
        e("  s_endpgm")
        e("L_mrg_r:")
        e("  s_waitcnt lgkmcnt(0)")
        e("  s_barrier")
        for j in range(8):
            a = F + 4 * j
            e(f"  ds_read_b128 v[{a}:{a+3}], v6 offset:{1024*j}")
        e(f"  ds_read_b64 v[24:25], v6 offset:8192")
        e("  s_waitcnt lgkmcnt(0)")
        e(f"  v_min_f32 v26, v25, v{NM[0]}")
        e(f"  v_sub_f32 v27, v26, v{NM[0]}")
        e(f"  v_sub_f32 v26, v26, v25")
        e(f"  v_exp_f32 v27, v27")
        e(f"  v_exp_f32 v26, v26")
        e("  s_nop 0")
        e(f"  v_mul_f32 v{Lr[0]}, v{Lr[0]}, v27")
        e(f"  v_fmac_f32 v{Lr[0]}, v24, v26")
        for r in range(32):
            e(f"  v_mul_f32 v{Or[0]+r}, v{Or[0]+r}, v27")
            e(f"  v_fmac_f32 v{Or[0]+r}, v{F+r}, v26")
    else:
        e("  s_barrier")
    if H: e("  s_mov_b32 s45, 8")
    else: e("  s_lshl_b32 s45, s36, 1")
    e("  s_mul_i32 s40, s37, 9")
    e("  s_add_u32 s40, s40, s45")
    e("  s_lshl_b32 s41, s40, 7")
    e("  s_lshl_b32 s39, s38, 2")
    e("  s_add_u32 s41, s41, s39")
    e("  s_lshl_b32 s41, s41, 10")
    e("  s_add_u32 s32, s12, s41")
    e("  s_addc_u32 s33, s13, 0")
    e(f"  s_mov_b32 s34, {131072*(T-1) + 4096}")
    e("  s_mov_b32 s35, 0x00020000")
    e("  s_mov_b32 s46, 8192")
    e("  s_mov_b32 s47, 131072")
    e("  s_mov_b32 s48, 139264")
    for tl in range(T):
        e(f"  v_rcp_f32 v{25+tl}, v{Lr[tl]}")
    e("  s_nop 0")
    for tl in range(T):
        for r in range(Or[tl], Or[tl] + 32):
            e(f"  v_mul_f32 v{r}, v{r}, v{25+tl}")
        for j in range(8):
            a = Or[tl] + 4 * j
            e(f"  v_cvt_pk_bf16_f32 v{Qr[tl]+2*j}, v{a}, v{a+1}")
            e(f"  v_cvt_pk_bf16_f32 v{Qr[tl]+1+2*j}, v{a+2}, v{a+3}")
        e("  s_nop 1")
        for s in range(4):
            e(f"  v_permlane16_swap_b32 v{Qr[tl]+4*s}, v{Qr[tl]+2+4*s}")
            e(f"  v_permlane16_swap_b32 v{Qr[tl]+1+4*s}, v{Qr[tl]+3+4*s}")
        so = "0" if tl == 0 else "s47"
        for s in range(4):
            e(f"  buffer_store_dwordx4 v[{Qr[tl]+4*s}:{Qr[tl]+3+4*s}], v4, s[32:35], {so} offen offset:{1024*s} sc1")
    stamp()
    e("  s_lshr_b32 s42, s38, 2")
    e("  s_and_b32 s43, s38, 3")
    e("  s_lshl_b32 s41, s40, 7")
    e("  s_lshl_b32 s3, s42, 4")
    e("  s_add_u32 s41, s41, s3")
    e("  s_lshl_b32 s41, s41, 10")
    e("  s_add_u32 s28, s12, s41")
    e("  s_addc_u32 s29, s13, 0")
    e(f"  s_mov_b32 s30, {131072*(T-1) + 16384}")
    e("  s_mov_b32 s31, 0x00020000")
    tr_addr_setup("o")
    e("  s_lshl_b32 s3, s43, 15")
    for j in range(8):
        e(f"  v_add_u32 v{14+j}, s3, v{14+j}")
    for tl in range(T):
        for r in range(Or[tl], Or[tl] + 32):
            e(f"  v_mov_b32 v{r}, 0")
    e("  s_lshl_b32 s3, s37, 2")
    e("  s_add_u32 s3, s3, s43")
    e("  s_lshl_b32 s41, s42, 5")
    e("  s_add_u32 s41, s41, s3")
    e("  s_mul_i32 s41, s41, 9")
    e("  s_add_u32 s41, s41, s45")
    e("  s_lshl_b32 s41, s41, 13")
    e(f"  s_add_u32 s41, s41, {PART_OFF}")
    e("  s_add_u32 s20, s12, s41")
    e("  s_addc_u32 s21, s13, 0")
    e(f"  s_mov_b32 s22, {8192*T}")
    e("  s_mov_b32 s23, 0x00020000")
    e("  s_mul_i32 s41, s3, 9")
    e("  s_add_u32 s41, s41, s45")
    e("  s_lshl_b32 s41, s41, 3")
    e("  s_add_u32 s41, s41, s42")
    e("  s_lshl_b32 s41, s41, 10")
    e(f"  s_add_u32 s41, s41, {PART_OFF}")
    e("  s_add_u32 s24, s12, s41")
    e("  s_addc_u32 s25, s13, 0")
    e(f"  s_mov_b32 s26, {7*2359296 + 8192*(T-1) + 1024}")
    e("  s_mov_b32 s27, 0x00020000")
    e("  s_mul_i32 s41, s37, 144")
    e("  s_lshl_b32 s39, s45, 4")
    e("  s_add_u32 s41, s41, s39")
    e("  s_lshl_b32 s41, s41, 10")
    e("  s_lshl_b32 s39, s43, 8")
    e("  s_add_u32 s41, s41, s39")
    e("  s_lshl_b32 s39, s42, 5")
    e("  s_add_u32 s41, s41, s39")
    e("  s_add_u32 s16, s74, s41")
    e("  s_addc_u32 s17, s75, 0")
    e("  s_sub_u32 s18, 1179648, s41")
    e("  s_mov_b32 s19, 0x00020000")
    e("  v_lshlrev_b32 v6, 10, v1")
    e("  v_lshl_add_u32 v6, v2, 3, v6")
    e("  v_add_u32 v7, 16384, v6")
    e("  s_waitcnt vmcnt(0)")
    e("  s_barrier")
    gemm_pair(T, 0, 32, lambda tl, kidx: Qr[tl] + 4 * kidx)
    e("  s_barrier")
    stamp()
    for q in range(3):
        e(f"  s_add_u32 s3, s43, {1+q}")
        e(f"  s_and_b32 s3, s3, 3")
        e(f"  s_lshl_b32 s{64+q}, s3, 12")
        e(f"  s_add_u32 s{68+q}, s{64+q}, 131072")
    for q in range(3):
        for tl in range(T):
            for kk in range(4):
                r = xreg(tl, 4 * (q + 1) + kk)
                so = f"s{64+q}" if tl == 0 else f"s{68+q}"
                e(f"  buffer_load_dwordx4 v[{r}:{r+3}], v4, s[28:31], {so} offen offset:{1024*kk} sc1")
    for q in range(3):
        e(f"  s_add_u32 s3, s43, {1+q}")
        e(f"  s_and_b32 s3, s3, 3")
        e(f"  s_cmp_eq_u32 s3, 0")
        e(f"  s_mov_b32 s39, 0x8000")
        e(f"  s_cselect_b32 s3, 0xfffe8000, s39")
        for j in range(8):
            e(f"  v_add_u32 v{14+j}, s3, v{14+j}")
        e(f"  s_waitcnt vmcnt({4*T*(2-q)})")
        gemm_pair(T, q + 1, 32)
    e("  s_nop 7")
    for tl in range(T):
        so = "0" if tl == 0 else "s46"
        for j in range(8):
            a = Or[tl] + 4 * j
            e(f"  buffer_store_dwordx4 v[{a}:{a+3}], v{4 + (j>>2)}, s[20:23], {so} offen offset:{1024*(j&3)} sc1")
    e("  s_waitcnt vmcnt(0)")
    stamp()
    e("  s_barrier")
    e("  s_barrier")
    stamp()
    for tl in range(T):
        for k2 in range(8):
            e(f"  s_mov_b32 s3, {k2*2359296 + tl*8192}")
            r = 124 + 32 * tl + 4 * k2
            e(f"  buffer_load_dwordx4 v[{r}:{r+3}], v4, s[24:27], s3 offen sc1")
    for tl in range(T):
        base = 124 + 32 * tl
        for k2 in range(1, 8):
            e(f"  s_waitcnt vmcnt({8*(T-1-tl) + 7-k2})")
            for r in range(4):
                e(f"  v_add_f32 v{base+r}, v{base+r}, v{base+4*k2+r}")
        e(f"  v_cvt_pk_bf16_f32 v{base}, v{base}, v{base+1}")
        e(f"  v_cvt_pk_bf16_f32 v{base+1}, v{base+2}, v{base+3}")
        e(f"  buffer_store_dwordx2 v[{base}:{base+1}], v{6+tl}, s[16:19], 0 offen")
    stamp()
    stamp_out()
    e("  s_endpgm")
    for tl in range(T):
        slow_path(tl, P + "ab"[tl], 8 if H else 16)

def producer_path():
    if "prio" in ARGS: e("  s_setprio 3")
    e("  s_sub_u32 s45, s36, 6")
    e("  s_lshl_b32 s46, s45, 14")
    e("  s_cmp_eq_u32 s45, 0")
    e("  s_cselect_b32 s60, s16, s20")
    e("  s_cselect_b32 s61, s17, s21")
    e("  s_mov_b32 s62, 262144")
    e("  s_mov_b32 s63, 0x00020000")
    for n in range(4):
        e(f"  v_add_u32 v24, {4*n}, v2")
        e(f"  v_add_u32 v25, {4*(n&1)}, v2")
        e(f"  v_lshlrev_b32 v25, 1, v25")
        e(f"  v_cndmask_b32 v24, v25, v24, s[48:49]")
        e(f"  v_xor_b32 v24, v24, v1")
        e(f"  v_lshlrev_b32 v24, 4, v24")
        e(f"  v_lshl_add_u32 v{4+n}, v2, 8, v24")
    for b in range(2):
        e(f"  v_add_u32 v24, {4*b}, v2")
        e(f"  v_lshlrev_b32 v24, 1, v24")
        e(f"  v_xor_b32 v24, v24, v1")
        e(f"  v_lshlrev_b32 v24, 4, v24")
        e(f"  v_lshl_add_u32 v{8+b}, v2, 13, v24")
        e(f"  v_lshl_add_u32 v{10+b}, v2, 10, v24")
    e("  s_lshl_b32 s47, s45, 19")
    e(f"  s_add_u32 s88, s12, {FLAG_OFF}")
    e("  s_addc_u32 s89, s13, 0")
    e("  s_mov_b32 s90, 65536")
    e("  s_mov_b32 s91, 0x00020000")
    e("  s_lshl_b32 s3, s2, 8")
    e("  v_mov_b32 v26, s3")
    e("  v_mov_b32 v27, 0")
    e("  s_cmp_lg_u32 s36, 6")
    e("  s_cbranch_scc1 L_noclr")
    e("  s_mov_b64 exec, 1")
    e("  buffer_store_dword v27, v26, s[88:91], 0 offen sc1")
    e("  buffer_store_dword v27, v26, s[88:91], 0 offen offset:128 sc1")
    e("  s_mov_b64 exec, -1")
    e("L_noclr:")
    e("  v_lshrrev_b32 v24, 3, v0")
    e("  v_and_b32 v25, 7, v0")
    for b_ in range(2):
        e(f"  v_add_u32 v31, {4*b_}, v2")
        e(f"  v_xor_b32 v31, v31, v25")
        e(f"  v_lshlrev_b32 v31, 4, v31")
        e(f"  v_lshl_add_u32 v{12+b_}, v24, 10, v31")
    uidc = [0]
    def issue_U(u, phys):
        uidc[0] += 1
        e(f"  s_add_u32 s64, s46, {phys*32768}")
        e("  s_cmp_eq_u32 s45, 0")
        e(f"  s_cbranch_scc0 L_ux{uidc[0]}")
        e(f"  s_mov_b32 s65, {u*524288}")
        for n in range(16):
            e(f"  s_mov_b32 m0, s64")
            e(f"  s_add_u32 s64, s64, 1024")
            e(f"  buffer_load_dwordx4 v{8 + ((n>>1)&1)}, s[24:27], s65 offen lds")
            if n < 15:
                e(f"  s_add_u32 s65, s65, 32768")
        e(f"  s_branch L_uj{uidc[0]}")
        e(f"L_ux{uidc[0]}:")
        e(f"  s_mov_b32 s65, {u*128}")
        for n in range(16):
            e(f"  s_mov_b32 m0, s64")
            e(f"  s_add_u32 s64, s64, 1024")
            e(f"  buffer_load_dwordx4 v{12 + (n&1)}, s[28:31], s65 offen lds")
            if n < 15:
                e(f"  s_add_u32 s65, s65, 8192")
        e(f"L_uj{uidc[0]}:")
    def issue_KV(slot, soff):
        e(f"  s_add_u32 s64, s46, {slot}")
        e(f"  s_mov_b32 s65, {soff}")
        for q in range(4):
            e(f"  s_mov_b32 m0, s64")
            e(f"  s_add_u32 s64, s64, 4096")
            for n in range(4):
                e(f"  buffer_load_dwordx4 v{4+n}, s[60:63], s65 offen offset:{1024*n}{NT} lds")
            if q < 3:
                e(f"  s_add_u32 s65, s65, 4096")
    issue_U(0, 0)
    issue_U(1, 1)
    EARLY = "early" in ARGS
    if not EARLY: issue_U(2, 2)
    waits = [16 if EARLY else 32, 48, 48, 48, 32, 32, 32, 32]
    for u in range(8):
        stamp()
        e(f"  s_waitcnt vmcnt({waits[u]})")
        e("  s_barrier")
        stamp()
        if u == 0:
            if EARLY: issue_U(2, 2)
            issue_U(3, 3)
            issue_KV(4 * 32768, 0)
        elif u <= 4:
            issue_U(u + 3, u - 1)
        else:
            issue_KV((u - 5) * 32768, (u - 4) * 16384)
    e("  s_barrier")
    issue_KV(3*32768, 4*16384)
    e("  s_mov_b32 s40, 0")
    e("  s_mov_b32 s41, 131072")
    e(f"  s_mov_b32 s43, {5*16384}")
    e("  s_lshr_b32 s66, s38, 2")
    e("  s_and_b32 s67, s38, 3")
    e("  s_lshl_b32 s3, s66, 19")
    e("  s_lshl_b32 s64, s67, 8")
    e("  s_add_u32 s3, s3, s64")
    e("  s_add_u32 s80, s72, s3")
    e("  s_addc_u32 s81, s73, 0")
    e("  s_sub_u32 s82, 4194304, s3")
    e("  s_mov_b32 s83, 0x00020000")
    INLOOP[0] = True
    e("L_loopP:")
    stamp()
    e("  s_waitcnt vmcnt(48)")
    stamp()
    e("  s_barrier")
    stamp()
    issue_KV("s41", "s43")
    e("  s_add_u32 s41, s41, 32768")
    e("  s_cmp_ge_u32 s41, 163840")
    e("  s_cselect_b32 s41, 0, s41")
    e("  s_add_u32 s43, s43, 16384")
    e("  s_add_u32 s40, s40, 1")
    e("  s_cmp_lt_u32 s40, 11")
    e("  s_cbranch_scc1 L_loopP")
    INLOOP[0] = False
    e("  s_lshl_b32 s43, s45, 16")
    e("  s_mov_b32 s40, 0")
    e("L_loopW:")
    e("  s_waitcnt vmcnt(48)")
    e("  s_barrier")
    e("  s_add_u32 s64, s46, s41")
    e("  s_mov_b32 s65, s43")
    for n in range(16):
        e(f"  s_mov_b32 m0, s64")
        e(f"  s_add_u32 s64, s64, 1024")
        e(f"  buffer_load_dwordx4 v{10 + ((n>>2)&1)}, s[80:83], s65 offen lds")
        if n < 15:
            e(f"  s_add_u32 s65, s65, 4096")
    e("  s_add_u32 s41, s41, 32768")
    e("  s_add_u32 s43, s43, 131072")
    e("  s_add_u32 s40, s40, 1")
    e("  s_cmp_lt_u32 s40, 4")
    e("  s_cbranch_scc1 L_loopW")
    e("  s_barrier")
    e("  s_mov_b32 s84, s76")
    e("  s_mov_b32 s85, s77")
    e("  s_mov_b32 s86, 256")
    e("  s_mov_b32 s87, 0x00020000")
    e("  s_lshl_b32 s3, s37, 3")
    e("  s_add_u32 s3, s3, s66")
    e("  s_lshl_b32 s3, s3, 2")
    e("  v_mov_b32 v21, s3")
    e("  s_lshl_b32 s3, s37, 2")
    e("  s_add_u32 s3, s3, s67")
    e("  s_lshl_b32 s3, s3, 2")
    e("  v_mov_b32 v23, s3")
    e("  v_mov_b32 v20, 1")
    e("  v_mov_b32 v22, 0x10000")
    e("  s_barrier")
    e("  s_waitcnt vmcnt(0)")
    stamp()
    e("  s_barrier")
    stamp()
    e("  s_lshl_b32 s3, s37, 5")
    e("  s_add_u32 s3, s3, s66")
    e("  v_lshl_add_u32 v28, v0, 3, s3")
    e("  v_lshlrev_b32 v28, 8, v28")
    e("  s_lshl_b32 s3, s37, 2")
    e("  s_add_u32 s3, s3, s67")
    e("  s_lshl_b32 s3, s3, 3")
    e("  v_add_u32 v29, s3, v0")
    e("  v_lshlrev_b32 v29, 8, v29")
    e("  v_mov_b32 v30, 1")
    def sync(lab, vdata, vaddr, shift, target, vmem, foff):
        e("  s_cmp_lg_u32 s36, 6")
        e(f"  s_cbranch_scc1 L_sd{lab}")
        e("  s_mov_b64 exec, 1")
        e(f"  buffer_atomic_add v{vdata}, v{vaddr}, s[84:87], 0 offen sc0 sc1")
        e("  s_waitcnt vmcnt(0)")
        e(f"  v_readfirstlane_b32 s3, v{vdata}")
        if shift: e(f"  s_lshr_b32 s3, s3, {shift}")
        e(f"  s_and_b32 s3, s3, {target-1}")
        e(f"  s_cmp_lg_u32 s3, {target-1}")
        e(f"  s_cbranch_scc1 L_sw{lab}")
        e(f"  s_mov_b64 exec, {(1<<target)-1}")
        e(f"  buffer_store_dword v30, v{vmem}, s[88:91], 0 offen offset:{foff} sc1")
        e(f"  s_branch L_sx{lab}")
        e(f"L_sw{lab}:")
        e("  s_mov_b32 s40, 0")
        e(f"L_sp{lab}:")
        e(f"  buffer_load_dword v24, v26, s[88:91], 0 offen offset:{foff} sc1")
        e("  s_waitcnt vmcnt(0)")
        e("  v_readfirstlane_b32 s3, v24")
        e(f"  s_cmp_eq_u32 s3, 1")
        e(f"  s_cbranch_scc1 L_sx{lab}")
        e("  s_sleep 1")
        e("  s_add_u32 s40, s40, 1")
        e("  s_cmp_lt_u32 s40, 0x10000")
        e(f"  s_cbranch_scc1 L_sp{lab}")
        e(f"L_sx{lab}:")
        e("  s_mov_b64 exec, -1")
        e(f"L_sd{lab}:")
    sync("1", 20, 21, 0, 4, 28, 0)
    stamp()
    e("  s_barrier")
    e("  s_barrier")
    stamp()
    sync("2", 22, 23, 16, 8, 29, 128)
    stamp()
    e("  s_barrier")
    stamp()
    stamp_out()
    e("  s_endpgm")

def gen_attn():
    e(".globl standalone__gqa_block_cached__near_ridge_kernel")
    e(".p2align 8")
    e(".type standalone__gqa_block_cached__near_ridge_kernel,@function")
    e("standalone__gqa_block_cached__near_ridge_kernel:")
    e("  s_cmp_ge_u32 s2, 256")
    e("  s_cbranch_scc1 L_attn_done")
    e("  s_load_dwordx8 s[4:11], s[0:1], 0")
    e("  s_load_dwordx2 s[12:13], s[0:1], 56")
    e("  s_load_dwordx8 s[72:79], s[0:1], 32")
    if STAMP:
        e("  s_mov_b32 s50, 0")
        e(f"  v_mov_b32 v{SV}, 0")
        e(f"  v_and_b32 v{SV+2}, 63, v0")
        stamp()
    lane_setup()
    e("  s_and_b32 s3, s2, 7")
    e("  s_lshr_b32 s37, s2, 3")
    e("  s_and_b32 s38, s37, 3")
    e("  s_lshl_b32 s3, s3, 2")
    e("  s_add_u32 s38, s38, s3")
    e("  s_lshr_b32 s37, s37, 2")
    e(f"  s_mov_b32 s44, 0x{f2u(CSCALE):08x}")
    e("  s_cmp_eq_u32 s36, 6")
    e("  s_cselect_b64 s[48:49], -1, 0")
    e("  s_waitcnt lgkmcnt(0)")
    e("  s_mul_i32 s40, s37, 147456")
    e("  s_add_u32 s28, s4, s40")
    e("  s_addc_u32 s29, s5, 0")
    e("  s_mov_b32 s30, 147456")
    e("  s_mov_b32 s31, 0x00020000")
    e("  s_cmp_ge_u32 s36, 6")
    e("  s_cbranch_scc1 L_prod")
    e("  s_cmp_ge_u32 s36, 4")
    e("  s_cbranch_scc1 L_c1")
    compute_path(2)
    e("L_c1:")
    compute_path(1)
    e("L_prod:")
    e("  s_lshl_b32 s39, s38, 8")
    e("  s_add_u32 s24, s10, s39")
    e("  s_addc_u32 s25, s11, 0")
    e("  s_sub_u32 s26, 4194304, s39")
    e("  s_mov_b32 s27, 0x00020000")
    e("  s_lshl_b32 s3, s37, 5")
    e("  s_add_u32 s3, s3, s38")
    e("  s_lshl_b32 s39, s3, 18")
    e("  s_lshr_b32 s40, s3, 14")
    e("  s_add_u32 s16, s6, s39")
    e("  s_addc_u32 s17, s7, s40")
    e("  s_add_u32 s20, s8, s39")
    e("  s_addc_u32 s21, s9, s40")
    producer_path()
    e("L_attn_done:")
    e("  s_endpgm")

def desc(name, vgpr, sgpr=72):
    e(f".amdhsa_kernel {name}")
    e(f"  .amdhsa_next_free_vgpr {vgpr}")
    e(f"  .amdhsa_next_free_sgpr {sgpr}")
    e(f"  .amdhsa_accum_offset {(vgpr+3)//4*4}")
    e("  .amdhsa_group_segment_fixed_size 0")
    e("  .amdhsa_kernarg_size 64")
    e("  .amdhsa_user_sgpr_count 2")
    e("  .amdhsa_user_sgpr_kernarg_segment_ptr 1")
    e("  .amdhsa_system_sgpr_workgroup_id_x 1")
    e(".end_amdhsa_kernel")

out.append(HEADER)
gen_attn()
e('.section .rodata,"a"')
e(".p2align 6")
desc("standalone__gqa_block_cached__near_ridge_kernel", 256, 96)
txt = "\n".join(out) + "\n"
for ln in txt.split("\n"):
    m = re.search(r"buffer_.*offset:(\d+)", ln)
    if m: assert int(m.group(1)) < 4096, ln
open(sys.argv[1], "w").write(txt)
```
